```python
import torch

def _softmax(x, axis=-1):
    return torch.softmax(x, dim=axis)

def _gelu(x):
    return torch.nn.functional.gelu(x, approximate='tanh')

def _silu(x):
    return torch.nn.functional.silu(x)

def _sigmoid(x):
    return torch.sigmoid(x)

def _layernorm(x, axis=-1, eps=1e-05):
    m = x.mean(dim=axis, keepdim=True)
    v = x.var(dim=axis, keepdim=True, unbiased=False)
    return (x - m) / torch.sqrt(v + eps)

def _scatter_add(tgt, idx, src, axis=0):
    return tgt.clone().index_add_(axis, idx, src)

def _segment_sum(src, seg, n):
    out = torch.zeros((n,) + src.shape[1:], dtype=src.dtype)
    return out.index_add_(0, seg, src)

def _pad(x, pw):
    flat = tuple((v for pair in reversed(pw) for v in pair))
    return torch.nn.functional.pad(x, flat)
kernel_name = 'adaLN_cond__ssm_conv_h3__glu_gated_bilinear__prompt'

def setup_inputs():

    _w = lambda a: (lambda t: t.to(torch.bfloat16) if t.is_floating_point() else t)(torch.as_tensor(a))

    def _A_setup():
        B, S, D = (1, 2048, 640)
        ks = 4
        return {'q': _w((lambda *s: torch.randn(*s, dtype=torch.bfloat16) * 0.05)(B, S, D)), 'k': _w((lambda *s: torch.randn(*s, dtype=torch.bfloat16) * 1.6)(B, S, D)), 'v': _w((lambda *s: torch.randn(*s, dtype=torch.bfloat16) * 1.6)(B, S, D)), 'shift_k': _w((lambda *s: torch.randn(*s, dtype=torch.bfloat16) * 1.6)(D, ks) * 0.5), 'ssm_k': _w((lambda *s: torch.randn(*s, dtype=torch.bfloat16) * 1.6)(D, S) * (1.0 / S ** 0.5)), 'ssm_D': _w((lambda *s: torch.randn(*s, dtype=torch.bfloat16) * 1.6)(D))}
    _A_in = _A_setup()

    def _B_setup():
        B, S, D, F = (1, 2048, 640, 1728)
        return {'x': _w((lambda *s: torch.randn(*s, dtype=torch.bfloat16) * 0.05)(B, S, D)), 'w_gate': _w((lambda *s: torch.randn(*s, dtype=torch.bfloat16) * 3.2)(D, F) * D ** (-0.5)), 'w_up': _w((lambda *s: torch.randn(*s, dtype=torch.bfloat16) * 3.2)(D, F) * D ** (-0.5)), 'w_down': _w((lambda *s: torch.randn(*s, dtype=torch.bfloat16) * 3.2)(F, D) * F ** (-0.5))}
    _B_in = _B_setup()
    return {'A_q': _A_in['q'], 'A_k': _A_in['k'], 'A_v': _A_in['v'], 'A_shift_k': _A_in['shift_k'], 'A_ssm_k': _A_in['ssm_k'], 'A_ssm_D': _A_in['ssm_D'], 'B_x': _B_in['x'], 'B_w_gate': _B_in['w_gate'], 'B_w_up': _B_in['w_up'], 'B_w_down': _B_in['w_down'], 'c': _w((lambda *s: torch.randn(*s, dtype=torch.bfloat16) * 0.1)(1, 640) * 8.0), 'w_mod': _w((lambda *s: torch.randn(*s, dtype=torch.bfloat16) * 0.1)(640, 6 * 640) * 640 ** (-0.5) * 8.0)}

def reference(A_q, A_k, A_v, A_shift_k, A_ssm_k, A_ssm_D, B_x, B_w_gate, B_w_up, B_w_down, c, w_mod):

    def _A_ref(q, k, v, shift_k, ssm_k, ssm_D):
        B, S, D = q.shape
        ks = shift_k.shape[-1]
        k_pad = _pad(k, ((0, 0), (ks - 1, 0), (0, 0)))
        k_shift = torch.zeros_like(k)
        for t in range(ks):
            k_shift = k_shift + k_pad[:, t:t + S, :] * shift_k[:, ks - 1 - t][None, None, :]
        kv = k_shift * v
        L = 2 * S
        kv_pad = _pad(kv, ((0, 0), (0, S), (0, 0)))
        kf_pad = _pad(ssm_k, ((0, 0), (0, S)))
        kv_f = (lambda x, axes=(-2, -1): torch.fft.rfft2(x.float(), dim=axes))(kv_pad[:, None, :, :], axes=(1, 2))
        kf_f = (lambda x, axes=(-2, -1): torch.fft.rfft2(x.float(), dim=axes))(kf_pad[:, None, :], axes=(1, 2))
        kf_f = (lambda x, *d: x.permute(*d))(kf_f, 1, 2, 0)
        y_f = kv_f * kf_f[None, :, :, :]
        y = (lambda x, s, axes=(-2, -1): torch.fft.irfft2(x, s=s, dim=axes).to(torch.bfloat16))(y_f, (1, L), axes=(1, 2))[:, 0, :S, :]
        y = y + kv * ssm_D[None, None, :]
        return q * y

    def _B_ref(x, w_gate, w_up, w_down):
        g = torch.einsum('bsd,df->bsf', x, w_gate)
        u = torch.einsum('bsd,df->bsf', x, w_up)
        h = g * u
        return torch.einsum('bsf,fd->bsd', h, w_down)
    x = A_q
    mod = (_silu(c) @ w_mod).reshape(c.shape[0], 6, 1, -1)
    sa, ca, ga, sb, cb, gb = (mod[:, 0].clone(), mod[:, 1].clone(), mod[:, 2].clone(), mod[:, 3].clone(), mod[:, 4].clone(), mod[:, 5].clone())
    h = _layernorm(x, axis=-1) * (1 + ca) + sa
    x = x + ga * _A_ref(h, A_k, A_v, A_shift_k, A_ssm_k, A_ssm_D)
    h = _layernorm(x, axis=-1) * (1 + cb) + sb
    x = x + gb * _B_ref(h, B_w_gate, B_w_up, B_w_down)
    return x
```

```python
import re

def v(n, c=1):
    return f"v{n}" if c == 1 else f"v[{n}:{n+c-1}]"
def a(n, c=1):
    return f"a{n}" if c == 1 else f"a[{n}:{n+c-1}]"
def s(n, c=1):
    return f"s{n}" if c == 1 else f"s[{n}:{n+c-1}]"

class Asm:
    def __init__(self):
        self.lines = []
        self.vm_q = []
        self.uid = 0
    def __call__(self, text):
        for ln in text.strip("\n").split("\n"):
            ln = ln.strip()
            if ln:
                self.lines.append(ln)
    def label(self, name):
        self.lines.append(name + ":")
    def newlabel(self, base):
        self.uid += 1
        return f"L_{base}_{self.uid}"
    def vm(self, tag, text):
        self.vm_q.append(tag)
        self(text)
    def wait_vm(self, *tags, extra=""):
        idx = -1
        for i, t in enumerate(self.vm_q):
            if t in tags:
                idx = i
        if idx < 0:
            if extra:
                self("s_waitcnt " + extra)
            return
        n = len(self.vm_q) - 1 - idx
        self.vm_q = self.vm_q[idx + 1:]
        self(f"s_waitcnt vmcnt({min(n, 63)}) {extra}")
    def wait_all(self, extra=""):
        self.vm_q = []
        self(f"s_waitcnt vmcnt(0) {extra}")
    def text(self):
        out = []
        for ln in self.lines:
            out.append(ln if ln.endswith(":") or ln.startswith(".") else "    " + ln)
        return "\n".join(out) + "\n"

_REG = re.compile(r"\b([vas])(\d+)\b|\b([vas])\[(\d+):(\d+)\]|\b(vcc|exec|m0|scc)\b")
def regs(opnd):
    out = set()
    for m in _REG.finditer(opnd):
        if m.group(1):
            out.add((m.group(1), int(m.group(2))))
        elif m.group(3):
            for i in range(int(m.group(4)), int(m.group(5)) + 1):
                out.add((m.group(3), i))
        else:
            out.add((m.group(6), 0))
    return out

TRANS = ("v_exp_", "v_log_", "v_rcp_", "v_rsq_", "v_sqrt_", "v_sin_", "v_cos_")
def parse(ln):
    ln = ln.split(";")[0].strip()
    parts = ln.split(None, 1)
    op = parts[0]
    ops = [x.strip() for x in re.split(r",(?![^\[]*\])", parts[1])] if len(parts) > 1 else []
    d = dict(op=op, w=set(), r=set(), kind="other", text=ln)
    R = lambda i: regs(ops[i].split()[0]) if i < len(ops) and ops[i] else set()
    allr = lambda frm: set().union(*[regs(o) for o in ops[frm:]]) if len(ops) > frm else set()
    if op.startswith("v_mfma"):
        d.update(kind="mfma", w=R(0), A=R(1) | R(2), C=R(3)); d["r"] = d["A"] | d["C"]
    elif op.startswith("v_cmp"):
        d.update(kind="valu", w=R(0), r=allr(1))
    elif op.startswith("v_permlane"):
        d.update(kind="valu", w=R(0) | R(1), r=R(0) | R(1), perm=True)
    elif op.startswith(("v_readfirstlane", "v_readlane")):
        d.update(kind="valu", w=R(0), r=allr(1), rdl=True)
    elif op.startswith("v_"):
        w = R(0); r = allr(1)
        if op.startswith(("v_fmac", "v_dot2c", "v_pk_fmac")): r |= w
        if "_co_" in op: w |= R(1); r = allr(2)
        if op.startswith("v_cndmask") and len(ops) < 4: r.add(("vcc", 0))
        d.update(kind="valu", w=w, r=r, trans=op.startswith(TRANS), dpp=("dpp" in op or "row_" in ln))
    elif op.startswith(("buffer_load", "global_load")):
        if " lds" in ln:
            d.update(kind="vmem", r=allr(0) | {("m0", 0)}, dma=True)
        else:
            d.update(kind="vmem", w=R(0), r=allr(1))
    elif op.startswith(("buffer_store", "global_store", "buffer_atomic", "global_atomic")):
        data = R(0) if op.startswith("buffer") else R(1)
        d.update(kind="vmem", r=allr(0), store=data if ("x3" in op or "x4" in op) else set())
    elif op.startswith("ds_read"):
        d.update(kind="ds", w=R(0), r=allr(1))
    elif op.startswith("ds_"):
        d.update(kind="ds", r=allr(0))
    elif op == "s_nop":
        d.update(kind="nop", n=int(ops[0]) + 1)
    elif op.startswith(("s_cmp", "s_waitcnt", "s_barrier", "s_branch", "s_cbranch", "s_endpgm", "s_sleep", "s_setprio")):
        d.update(kind="salu", r=allr(0))
    elif op.startswith("s_"):
        d.update(kind="salu", w=R(0), r=allr(1))
    return d

def check_hazards(lines):
    ins = [parse(l) for l in lines if not l.endswith(":") and not l.startswith(".") and not l.startswith(";")]
    probs = []
    for i, c in enumerate(ins):
        dist = 0
        for j in range(i - 1, max(-1, i - 24), -1):
            p = ins[j]
            if p["op"] in ("s_branch", "s_endpgm"):
                break
            need = 0
            vw = {x for x in p["w"] if x[0] in "va"}
            sw = {x for x in p["w"] if x[0] in ("s", "vcc")}
            if p["kind"] == "valu":
                if c["kind"] == "mfma" and vw & c["r"]: need = 2
                if c.get("perm") and vw & c["r"]: need = max(need, 2)
                if c.get("dpp") and vw & c["r"]: need = max(need, 2)
                if c.get("rdl") and vw & c["r"]: need = max(need, 1)
                if p.get("trans") and c["kind"] == "valu" and not c.get("trans") and vw & c["r"]: need = max(need, 1)
                if c["kind"] == "vmem" and sw & c["r"]: need = max(need, 5)
                if c["kind"] == "valu" and sw & c["r"]: need = max(need, 4 if c.get("rdl") else 2)
            if p["kind"] == "mfma":
                if c["kind"] == "mfma":
                    if vw & c["A"]: need = 8
                    elif vw & c["C"] and vw != c["C"]: need = 6
                elif c["kind"] in ("valu", "vmem", "ds") and vw & (c["r"] | c["w"]): need = 8
                if c["kind"] == "valu" and p["C"] & c["w"]: need = max(need, 3)
            if p["kind"] == "salu" and ("m0", 0) in p["w"] and c.get("dma"): need = 1
            if p.get("store") and c["kind"] == "valu" and p["store"] & c["w"]: need = 2
            if p.get("store") and c["kind"] in ("vmem", "ds") and p["store"] & c["w"]: need = max(need, 1)
            if need > dist:
                probs.append(f"need {need} have {dist}: [{p['text']}] -> [{c['text']}]")
            dist += p.get("n", 1)
            if dist >= 12:
                break
    return probs
```

```python
import sys, os
sys.path.insert(0, os.path.dirname(os.path.abspath(__file__)))
from emit import Asm, v, a, s, check_hazards

NAME = "adaLN_cond__ssm_conv_h3__glu_gated_bilinear__prompt"
KNAME = NAME + "_kernel"

FLG = 0x1000
FKV, FA, FB, FZ, FHH, FC = 0, 160, 256, 352, 512, 768
KVT, QT, ZT, X1T = 0x100000, 0x400000, 0x700000, 0xA00000
ST1, MODF, MODB, CV, ST2 = 0xD00000, 0xD10000, 0xD20000, 0xD30000, 0xD40000
PST = 0xE00000
W1P, WDP, HH = 0x1100000, 0x1600000, 0x1900000
DBG = 0x2100000
WS_SIZE = 0x2200000
NIN = 2048 * 640 * 2
OOB = 0x7ff00000
SPIN_LIMIT = 40000

sW, sXCD, sIDX, sROLE = 4, 5, 6, 7
sN = 8
sWS, sA, sB, sC, sWP, sD = 12, 16, 20, 24, 28, 32
pQ, pK, pV, pSH, pSK, pSD, pBX, pWG, pWU, pWD, pC, pWM, pOUT, pDBG, pWS = range(36, 66, 2)
sMI, sFJ, sR2, sCJ = 66, 67, 68, 69
sT = 70
sST = 80

class Cfg:
    stop = None
    stamps = False
    clk = False
    nt = True
    out_mod = ""
C = Cfg()
def NT(): return " nt" if C.nt else ""
SC = " sc1"
def fl(i): return FLG + 128 * i

def srd(A, reg, ptr, size, add=None):
    if add is None:
        A(f"s_mov_b32 {s(reg)}, {s(ptr)}\ns_and_b32 {s(reg+1)}, {s(ptr+1)}, 0xffff")
    else:
        A(f"s_add_u32 {s(reg)}, {s(ptr)}, {add}\ns_addc_u32 {s(reg+1)}, {s(ptr+1)}, 0\ns_and_b32 {s(reg+1)}, {s(reg+1)}, 0xffff")
    A(f"s_mov_b32 {s(reg+2)}, {size}\ns_mov_b32 {s(reg+3)}, 0x20000")

def TM(): return "s_memtime" if C.clk else "s_memrealtime"
def stamp(A, k):
    if C.stamps:
        A(f"{TM()} s[10:11]\ns_waitcnt lgkmcnt(0)\ns_mov_b32 {s(sST+k)}, s10")

def nonce(A, vsrc):
    A(f"""v_readfirstlane_b32 {s(sN)}, {v(vsrc)}
    s_mul_i32 {s(sN)}, {s(sN)}, 0x9e3779b1
    s_add_u32 {s(sN)}, {s(sN)}, 0x7f4a7c15
    s_not_b32 {s(sN+1)}, {s(sN)}""")

def poll_issue(A, tag, vaddr, vt):
    A.vm(tag, f"buffer_load_dwordx2 {v(vt,2)}, {v(vaddr)}, {s(sWS,4)}, 0 offen{SC}")
def poll_check(A, tag, vaddr, vt, sleep=1):
    ok, lp = A.newlabel("pok"), A.newlabel("plp")
    A.wait_vm(tag)
    A(f"""v_cmp_eq_u64 vcc, {s(sN,2)}, {v(vt,2)}
    s_cmp_eq_u64 vcc, exec
    s_cbranch_scc1 {ok}
    s_mov_b32 s10, 0""")
    A.label(lp)
    if sleep: A(f"s_sleep {sleep}")
    A(f"""buffer_load_dwordx2 {v(vt,2)}, {v(vaddr)}, {s(sWS,4)}, 0 offen{SC}
    s_add_u32 s10, s10, 1
    s_waitcnt vmcnt(0)
    v_cmp_eq_u64 vcc, {s(sN,2)}, {v(vt,2)}
    s_cmp_eq_u64 vcc, exec
    s_cbranch_scc1 {ok}
    s_cmp_lt_u32 s10, {SPIN_LIMIT}
    s_cbranch_scc1 {lp}""")
    A.label(ok)
def poll(A, vaddr, vt, sleep=1):
    poll_issue(A, "poll", vaddr, vt)
    poll_check(A, "poll", vaddr, vt, sleep)

def post(A, sidx, base, vt):
    sk = A.newlabel("post")
    A(f"""s_barrier
    s_cmp_lg_u32 {s(sW)}, 0
    s_cbranch_scc1 {sk}
    s_lshl_b32 s10, {s(sidx)}, 7
    s_add_u32 s10, s10, {fl(base)}
    v_mov_b32 {v(vt)}, {s(sN)}
    v_mov_b32 {v(vt+1)}, {s(sN+1)}
    s_mov_b64 exec, 1
    buffer_store_dwordx2 {v(vt,2)}, off, {s(sWS,4)}, s10{SC}
    s_mov_b64 exec, -1""")
    A.label(sk)

def interleave(A, mf, fill, start=0, per=1):
    for i, m in enumerate(mf):
        A(m)
        for f in fill.get(i, []):
            if callable(f): f()
            else: A(f)
    for k in sorted(fill):
        if k >= len(mf):
            for f in fill[k]:
                if callable(f): f()
                else: A(f)

def spread(fill, items, first, last):
    n = len(items)
    for i, it in enumerate(items):
        g = first + (i * (last - first + 1)) // n
        fill.setdefault(g, []).append(it)

MF = "v_mfma_f32_16x16x32_bf16"

def entry(A):
    A(f"""s_cmp_ge_u32 s2, 256
    s_cbranch_scc1 L_end
    s_load_dwordx16 s[36:51], s[0:1], 0
    s_load_dwordx8 s[52:59], s[0:1], 64
    s_load_dwordx4 s[60:63], s[0:1], 96
    s_load_dwordx2 s[64:65], s[0:1], 112""")
    if C.stamps:
        A(f"{TM()} s[{sST}:{sST+1}]")
    A(f"""v_lshrrev_b32 v2, 6, v0
    v_and_b32 v1, 63, v0
    s_and_b32 {s(sXCD)}, s2, 7
    s_lshr_b32 {s(sIDX)}, s2, 3
    v_readfirstlane_b32 {s(sW)}, v2
    v_lshlrev_b32 v4, 4, v1
    s_lshr_b32 s10, {s(sXCD)}, 1
    s_lshl_b32 s10, s10, 2
    s_lshr_b32 s11, {s(sIDX)}, 3
    s_add_u32 {s(sMI)}, s10, s11
    s_lshl_b32 s10, {s(sXCD)}, 2
    s_add_u32 {s(sR2)}, s10, s11
    s_and_b32 {s(sCJ)}, {s(sIDX)}, 7
    s_and_b32 s10, {s(sXCD)}, 1
    s_lshl_b32 s10, s10, 3
    s_add_u32 {s(sFJ)}, s10, {s(sCJ)}
    s_waitcnt lgkmcnt(0)""")
    srd(A, sWS, pWS, WS_SIZE)
    A.vm("w0", f"buffer_load_dword v9, off, {s(sWS,4)}, 0{SC}")
    if C.stamps:
        for k in range(1, 17): A(f"s_mov_b32 {s(sST+k)}, 0")
    A(f"""s_cmp_ge_u32 {s(sIDX)}, 20
    s_cbranch_scc1 L_side""")

def code_prefetch(A, vdst):
    sk = A.newlabel("pf")
    pc = A.newlabel("pc")
    A(f"""s_getpc_b64 s[10:11]""")
    A.label(pc)
    A(f"""s_lshl_b32 s3, {s(sIDX)}, 2
    s_add_u32 s3, s3, {s(sW)}
    s_lshl_b32 s3, s3, 10
    s_cmp_gt_u32 s3, (L_end-{pc})-1024
    s_cselect_b32 s3, 0, s3
    v_add_u32 {v(vdst)}, s3, v4""")
    A.vm("pf", f"global_load_dwordx4 {v(vdst,4)}, {v(vdst)}, s[10:11]")

KC_STRIDE, CP = 16640, 4160
XR0, XR_STRIDE = 66560, 4608
ST1L = 84992
def conv_p0(A):
    A(f"""s_mul_i32 {s(sROLE)}, {s(sXCD)}, 20
    s_add_u32 {s(sROLE)}, {s(sROLE)}, {s(sIDX)}
    s_lshr_b32 s70, {s(sROLE)}, 4
    s_and_b32 s71, {s(sROLE)}, 15
    s_lshl_b32 s71, s71, 7
    s_lshl_b32 s72, {s(sW)}, 5
    s_add_u32 s71, s71, s72
    v_lshrrev_b32 v2, 4, v1
    v_and_b32 v3, 15, v1
    v_lshl_add_u32 v10, v2, 3, s71
    s_movk_i32 s72, 1280
    v_mul_lo_u32 v5, v10, s72
    s_lshl_b32 s73, s70, 7
    v_lshl_add_u32 v5, v3, 3, v5
    v_add_u32 v5, s73, v5
    v_subrev_u32 v6, 3840, v5""")
    srd(A, sA, pK, NIN); srd(A, sB, pV, NIN); srd(A, sC, pSH, 5120)
    A(f"""s_movk_i32 s74, 3840
    s_movk_i32 s75, 7680
    s_lshl_b32 s73, s70, 9
    v_lshl_add_u32 v7, v3, 5, s73""")
    for i in range(11):
        if i < 3: ad, so, im = 6, "0", 1280 * i
        else:
            k = i - 3
            ad, so, im = 5, ("0", "s74", "s75")[k // 3], 1280 * (k % 3)
        A.vm("kv", f"buffer_load_dwordx2 {v(10+2*i,2) if i else v(164,2)}, {v(ad)}, {s(sA,4)}, {so} offen offset:{im}{NT()}")
    for k in range(8):
        A.vm("kv", f"buffer_load_dwordx2 {v(32+2*k,2)}, v5, {s(sB,4)}, {('0','s74','s75')[k//3]} offen offset:{1280*(k%3)}{NT()}")
    A.vm("kv", f"buffer_load_dwordx4 v[48:51], v7, {s(sC,4)}, 0 offen")
    A.vm("kv", f"buffer_load_dwordx4 v[52:55], v7, {s(sC,4)}, 0 offen offset:16")
    code_prefetch(A, 252)
    A(f"""s_lshl_b32 s73, s70, 18
    s_add_u32 s73, s73, {KVT + 4080}
    v_lshl_add_u32 v8, v3, 14, s73
    v_lshlrev_b32 v10, 1, v10
    v_sub_u32 v8, v8, v10
    s_mul_i32 s76, {s(sW)}, {KC_STRIDE}
    s_mul_i32 s77, {s(sW)}, {XR_STRIDE}
    s_add_u32 s77, s77, {XR0}
    v_mov_b32 v244, 0
    v_mov_b32 v245, 0
    v_mov_b32 v246, 0
    v_mov_b32 v247, 0
    v_and_b32 v248, 31, v1
    v_lshl_add_u32 v248, v248, 4, s77
    ds_write_b128 v248, v[244:247] offset:4096
    v_and_b32 v249, 1, v1
    v_bfe_u32 v250, v1, 1, 2
    v_mul_u32_u24 v250, {CP}, v250
    v_lshl_add_u32 v249, v249, 4, v250
    v_add_u32 v249, s76, v249
    ds_write_b128 v249, v[244:247]""")
    A.wait_vm("kv")
    nonce(A, 9)
    for c in range(4):
        for j in range(4):
            src = 48 + 2 * c + (j >> 1)
            A(f"v_lshlrev_b32 {v(56+4*j+c)}, 16, {v(src)}" if j % 2 == 0 else f"v_and_b32 {v(56+4*j+c)}, 0xffff0000, {v(src)}")
    def unpack4(dst, src):
        A(f"""v_lshlrev_b32 {v(dst)}, 16, {v(src)}
        v_and_b32 {v(dst+1)}, 0xffff0000, {v(src)}
        v_lshlrev_b32 {v(dst+2)}, 16, {v(src+1)}
        v_and_b32 {v(dst+3)}, 0xffff0000, {v(src+1)}""")
    for i in range(11):
        unpack4(72 + 4 * i, 10 + 2 * i if i else 164)
    for i in range(8):
        unpack4(116 + 4 * i, 32 + 2 * i)
    for i in range(8):
        for hp in range(2):
            P = 148 + 2 * hp
            K = lambda r: v(72 + 4 * r + 2 * hp, 2)
            T = lambda j: v(56 + 4 * j + 2 * hp, 2)
            A(f"v_pk_mul_f32 {v(P,2)}, {K(i+3)}, {T(0)}")
            for j in (1, 2, 3):
                A(f"v_pk_fma_f32 {v(P,2)}, {K(i+3-j)}, {T(j)}, {v(P,2)}")
            A(f"v_pk_mul_f32 {v(116+4*i+2*hp,2)}, {v(P,2)}, {v(116+4*i+2*hp,2)}")
    for c in range(4):
        for j in range(4):
            A(f"v_cvt_pk_bf16_f32 {v(10+4*c+j)}, {v(116+4*(7-2*j)+c)}, {v(116+4*(6-2*j)+c)}")
        if c: A(f"s_movk_i32 s10, {4096*c}")
        A.vm("kvst", f"buffer_store_dwordx4 {v(10+4*c,4)}, v8, {s(sWS,4)}, {'s10' if c else '0'} offen{SC}")
    stamp(A, 1)
    A(f"""s_lshl_b32 s78, {s(sROLE)}, 2
    s_add_u32 s78, s78, {s(sW)}
    s_lshl_b32 s79, s78, 12""")
    srd(A, sA, pSK, 4096, add="s79")
    A("v_add_u32 v5, 4, v4")
    for i in range(4):
        A.vm("sk", f"buffer_load_dwordx4 {v(164+6*i,4)}, v4, {s(sA,4)}, 0 offen offset:{1024*i}{NT()}")
        A.vm("sk", f"buffer_load_dwordx2 {v(168+6*i,2)}, v4, {s(sA,4)}, 0 offen offset:{1024*i+16}")
    for c, ad in ((0, 4), (2, 5)):
        A(f"s_add_u32 m0, s76, {c*CP+32}\ns_nop 0")
        for i in range(4):
            A.vm("skd", f"buffer_load_dwordx4 {v(ad)}, {s(sA,4)}, 0 offen offset:{1024*i} lds")
    A.wait_vm("kvst")
    post(A, sROLE, FKV, 188)
    stamp(A, 2)
    A(f"""v_and_b32 v10, 15, v1
    v_lshrrev_b32 v11, 4, v1
    v_add_u32 v12, 1, v10
    v_and_b32 v13, 3, v12
    v_mul_u32_u24 v13, {CP}, v13
    v_lshrrev_b32 v12, 2, v12
    v_lshl_add_u32 v13, v12, 3, v13
    v_lshl_add_u32 v13, v11, 4, v13
    v_add_u32 v2, s76, v13
    v_lshlrev_b32 v12, 4, v11
    v_lshlrev_b32 v13, 5, v10
    v_sub_u32 v12, v12, v13
    s_add_u32 s10, s77, 480
    v_add_u32 v3, s10, v12
    v_add_u32 v14, s76, v4
    s_and_b32 s10, {s(sROLE)}, 0xf0
    v_add_u32 v15, s10, v10
    v_lshlrev_b32 v15, 7, v15
    v_add_u32 v15, {fl(FKV)}, v15""")
    A.wait_vm("sk")
    for i in range(4):
        d = 164 + 6 * i
        o = 190 + 8 * i
        for t in range(4):
            A(f"v_alignbyte_b32 {v(o+t)}, {v(d+t+1)}, {v(d+t)}, 2")
        for t in range(4):
            A(f"v_alignbyte_b32 {v(o+4+t)}, {v(d+t+2)}, {v(d+t+1)}, 2")
        A(f"ds_write_b128 v14, {v(o,4)} offset:{CP+32+1024*i}")
        A(f"ds_write_b128 v14, {v(o+4,4)} offset:{3*CP+32+1024*i}")
    A(f"""v_lshlrev_b32 v222, 16, v164
    v_mov_b32 v223, s76
    s_mov_b64 exec, 1
    ds_write_b32 v223, v222 offset:{CP+28}
    ds_write_b32 v223, v164 offset:{2*CP+28}
    ds_write_b32 v223, v222 offset:{3*CP+24}
    ds_write_b32 v223, v190 offset:{3*CP+28}
    s_mov_b64 exec, -1""")
    poll(A, 15, 224)
    stamp(A, 3)
    A(f"s_mov_b32 m0, s77\ns_add_u32 s10, s79, {KVT}")
    for i in range(4):
        A.vm("x", f"buffer_load_dwordx4 v4, {s(sWS,4)}, s10 offen offset:{1024*i}{SC} lds")

ACC, FA0, FB0, FA1, FB1 = 16, 48, 80, 112, 144
def conv_reads(buf, r):
    fa, fb = (FA0, FB0) if buf == 0 else (FA1, FB1)
    def ra(p):
        u = 8 * p + r
        return [f"ds_read_b64 {v(fa+4*p,2)}, v2 offset:{64*u}", f"ds_read_b64 {v(fa+4*p+2,2)}, v2 offset:{64*u+8}"]
    out = ra(0)
    for q in range(8):
        out.append(f"ds_read_b128 {v(fb+4*q,4)}, v3 offset:{64*(56-(8*q-r))}")
    for p in range(1, 8):
        out += ra(p)
    return out

def w1_bases(A):
    A(f"""s_mul_i32 s70, {s(sFJ)}, 14
    s_lshr_b32 s10, {s(sW)}, 1
    s_mul_i32 s10, s10, 7
    s_add_u32 s70, s70, s10
    s_add_u32 s71, s70, 6
    s_and_b32 s10, {s(sW)}, 1
    s_mul_i32 s10, s10, 3
    s_add_u32 s70, s70, s10
    s_mul_i32 s70, s70, 20480
    s_mul_i32 s71, s71, 20480""")
    srd(A, sWP, pWS, 216 * 20480, add=W1P)

def w1_loads(A, steps, dst=None):
    out = []
    for t in range(4):
        for j in steps:
            def f(t=t, j=j, first=(j == steps[0] or j % 4 == 0)):
                if first:
                    A(f"s_add_u32 s3, {'s70' if t < 3 else 's71'}, {(t if t < 3 else 0)*20480 + 4096*(j//4)}")
                d = dst(j, t) if dst else a(16*j+4*t, 4)
                A.vm("w1", f"buffer_load_dwordx4 {d}, v4, {s(sWP,4)}, s3 offen offset:{1024*(j%4)}{SC}")
            out.append(f)
    return out

def conv_main(A):
    w1_bases(A)
    A(f"""v_min_u32 v5, 23, v1
    v_lshlrev_b32 v5, 7, v5
    v_add_u32 v5, {fl(FA)}, v5""")
    A(f"""s_lshr_b32 s10, s78, 6
    v_min_u32 v6, 35, v1
    v_subrev_u32 v7, 32, v6
    v_mul_u32_u24 v7, 10, v7
    v_add_u32 v7, s10, v7
    v_add_u32 v7, {FA+24}, v7
    v_add_u32 v8, {FA+64}, v6
    v_cmp_gt_u32 vcc, 32, v6
    s_nop 1
    v_cndmask_b32 v6, v7, v8, vcc
    v_lshlrev_b32 v6, 7, v6
    v_add_u32 v6, {FLG}, v6""")
    A.wait_vm("x", "skd")
    A("s_waitcnt lgkmcnt(0)")
    stamp(A, 4)
    for rd in conv_reads(0, 0): A(rd)
    A(f"""v_and_b32 v10, 15, v1
    v_lshrrev_b32 v11, 4, v1
    v_lshlrev_b32 v12, 5, v10
    v_lshl_add_u32 v12, v11, 3, v12
    s_add_u32 s10, s79, {QT}
    v_add_u32 v7, s10, v12
    s_add_u32 s10, s77, 504
    v_sub_u32 v8, s10, v12
    v_lshlrev_b32 v9, 1, v12
    v_add_u32 v9, {ST1L}, v9""")
    srd(A, sA, pSD, 1280)
    w1 = []
    for g in range(4):
        w1 += w1_loads(A, [4*g, 4*g+1, 4*g+2, 4*g+3])
    per = {2: 10, 3: 10, 4: 10, 5: 6, 6: 10, 7: 10}
    def epi_loads():
        out = []
        for t in range(8):
            out.append(lambda t=t: A.vm("ep", f"buffer_load_dwordx2 {v(176+2*t,2)}, v7, {s(sWS,4)}, 0 offen offset:{512*t}{SC}"))
        def st(i):
            if i == 0:
                A(f"s_lshl_b32 s72, {s(sW)}, 12\ns_add_u32 m0, s72, {ST1L}\ns_add_u32 s72, s72, {ST1}")
            A.vm("ep", f"buffer_load_dwordx4 v4, {s(sWS,4)}, s72 offen offset:{1024*i}{SC} lds")
        for i in range(4): out.append(lambda i=i: st(i))
        def cst():
            A(f"s_lshl_b32 s10, s78, 2\ns_add_u32 s10, s10, {MODF}")
            A.vm("ep", f"buffer_load_dword v196, off, {s(sWS,4)}, s10{SC}")
            A.vm("ep", f"buffer_load_dword v197, off, {s(sWS,4)}, s10 offset:2560{SC}")
            A(f"s_add_u32 s10, s10, 5120")
            A.vm("ep", f"buffer_load_dword v198, off, {s(sWS,4)}, s10{SC}")
            A(f"s_add_u32 s10, s10, 5120")
            A.vm("ep", f"buffer_load_dword v195, off, {s(sWS,4)}, s10{SC}")
            A(f"s_lshl_b32 s10, s78, 1")
            A.vm("ep", f"buffer_load_ushort v192, off, {s(sA,4)}, s10")
        out.append(cst)
        return out
    for r in range(8):
        cur = r & 1
        fa, fb = (FA0, FB0) if cur == 0 else (FA1, FB1)
        if r == 2: poll_check(A, "p1", 5, 200)
        if r == 5: poll_check(A, "p2", 6, 202)
        A("s_waitcnt lgkmcnt(0)")
        mf = []
        for p in range(8):
            for q in range(8 - p):
                t = p + q
                cc = "0" if (r == 0 and p == 0) else v(ACC+4*t, 4)
                mf.append(f"{MF} {v(ACC+4*t,4)}, {v(fa+4*p,4)}, {v(fb+4*q,4)}, {cc}")
        fill = {}
        if r < 7: spread(fill, conv_reads(1 - cur, r + 1), 0, 27)
        if r == 1: fill.setdefault(0, []).append(lambda: poll_issue(A, "p1", 5, 200))
        if r == 4: fill.setdefault(0, []).append(lambda: poll_issue(A, "p2", 6, 202))
        vmops = (epi_loads() if r == 5 else []) + [w1.pop(0) for _ in range(per.get(r, 0))]
        if vmops: spread(fill, vmops, 1, 35)
        interleave(A, mf, fill)
    stamp(A, 5)
    return w1

def conv_epilogue(A, w1rest):
    A.wait_vm("ep")
    A("s_barrier")
    A("""v_lshlrev_b32 v192, 16, v192
    v_mul_f32 v193, v198, v197
    v_mul_f32 v194, v198, v196""")
    def rd(t, b):
        A(f"ds_read_b64 {v(200+12*b,2)}, v8 offset:{512*(7-t)}")
        A(f"ds_read_b128 {v(202+12*b,4)}, v9 offset:{1024*t}")
        A(f"ds_read_b128 {v(206+12*b,4)}, v9 offset:{8192+1024*t}")
    rd(0, 0)
    A(f"""v_and_b32 v10, 15, v1
    v_lshrrev_b32 v11, 4, v1
    v_and_b32 v12, 1, v11
    v_lshlrev_b32 v12, 9, v12
    v_lshl_add_u32 v12, v10, 5, v12
    v_lshrrev_b32 v11, 1, v11
    v_lshl_add_u32 v12, v11, 4, v12
    v_add_u32 v13, s76, v12
    s_add_u32 s10, s79, {X1T}
    v_add_u32 v14, s10, v12
    s_add_u32 s10, s79, {ZT}
    v_add_u32 v15, s10, v12""")
    BC0, BC1 = "op_sel:[0,0,0] op_sel_hi:[1,0,1]", "op_sel:[0,1,0] op_sel_hi:[1,1,1]"
    for t in range(8):
        b = t & 1
        if t < 7: rd(t + 1, 1 - b)
        for _ in range(3):
            if w1rest: w1rest.pop(0)()
        A(f"s_waitcnt lgkmcnt({3 if t < 7 else 0})")
        kv, rho, mr = 200 + 12 * b, 202 + 12 * b, 206 + 12 * b
        q = 176 + 2 * t
        X, Q, Y, T = 224, 228, 232, 236
        xo, zo = 48 + 8 * (t >> 1) + 2 * b, 52 + 8 * (t >> 1) + 2 * b
        A(f"""v_and_b32 {v(X)}, 0xffff0000, {v(kv+1)}
        v_lshlrev_b32 {v(X+1)}, 16, {v(kv+1)}
        v_and_b32 {v(X+2)}, 0xffff0000, {v(kv)}
        v_lshlrev_b32 {v(X+3)}, 16, {v(kv)}
        v_lshlrev_b32 {v(Q)}, 16, {v(q)}
        v_and_b32 {v(Q+1)}, 0xffff0000, {v(q)}
        v_lshlrev_b32 {v(Q+2)}, 16, {v(q+1)}
        v_and_b32 {v(Q+3)}, 0xffff0000, {v(q+1)}""")
        for h in (0, 2):
            A(f"v_pk_fma_f32 {v(Y+h,2)}, {v(X+h,2)}, v[192:193], {v(ACC+4*t+h,2)} {BC0}")
            A(f"v_pk_fma_f32 {v(T+h,2)}, {v(Q+h,2)}, {v(rho+h,2)}, {v(mr+h,2)} neg_lo:[0,0,1] neg_hi:[0,0,1]")
        for h in (0, 2):
            A(f"v_pk_fma_f32 {v(T+h,2)}, {v(T+h,2)}, v[192:193], v[194:195] op_sel:[0,1,0] op_sel_hi:[1,1,0]")
        for h in (0, 2):
            A(f"v_pk_fma_f32 {v(Y+h,2)}, {v(Y+h,2)}, {v(T+h,2)}, {v(Q+h,2)}")
        A(f"""v_cvt_pk_bf16_f32 {v(xo)}, {v(Y)}, {v(Y+1)}
        v_cvt_pk_bf16_f32 {v(xo+1)}, {v(Y+2)}, {v(Y+3)}
        v_lshlrev_b32 {v(X)}, 16, {v(xo)}
        v_and_b32 {v(X+1)}, 0xffff0000, {v(xo)}
        v_lshlrev_b32 {v(X+2)}, 16, {v(xo+1)}
        v_and_b32 {v(X+3)}, 0xffff0000, {v(xo+1)}
        v_pk_mul_f32 {v(X,2)}, {v(X,2)}, v[194:195] op_sel:[0,1] op_sel_hi:[1,1]
        v_pk_mul_f32 {v(X+2,2)}, {v(X+2,2)}, v[194:195] op_sel:[0,1] op_sel_hi:[1,1]
        v_cvt_pk_bf16_f32 {v(zo)}, {v(X)}, {v(X+1)}
        v_cvt_pk_bf16_f32 {v(zo+1)}, {v(X+2)}, {v(X+3)}""")
        if b == 1:
            x0, z0 = xo - 2, zo - 2
            A(f"""v_permlane16_swap_b32 {v(x0)}, {v(x0+2)}
            v_permlane16_swap_b32 {v(x0+1)}, {v(x0+3)}
            v_permlane16_swap_b32 {v(z0)}, {v(z0+2)}
            v_permlane16_swap_b32 {v(z0+1)}, {v(z0+3)}""")
            A.vm("zst", f"buffer_store_dwordx4 {v(z0,4)}, v15, {s(sWS,4)}, 0 offen offset:{512*(t-1)}{SC}")
            A.vm("zst", f"buffer_store_dwordx4 {v(x0,4)}, v14, {s(sWS,4)}, 0 offen offset:{512*(t-1)}{SC}")
            A(f"ds_write_b128 v13, {v(x0,4)} offset:{512*(t-1)}")
    while w1rest: w1rest.pop(0)()
    A(f"""s_lshl_b32 s10, {s(sW)}, 10
    v_lshl_add_u32 v10, v1, 2, s10
    v_lshrrev_b32 v11, 3, v1
    s_lshl_b32 s10, {s(sW)}, 5
    v_add_u32 v11, s10, v11
    v_mul_u32_u24 v11, 160, v11
    v_add_u32 v11, {s(sROLE)}, v11
    v_lshlrev_b32 v11, 7, v11
    v_and_b32 v12, 7, v1
    v_lshl_add_u32 v11, v12, 4, v11
    v_add_u32 v11, {PST}, v11
    s_waitcnt lgkmcnt(0)
    s_barrier""")
    for k in range(4):
        for ch in range(4):
            A(f"ds_read_b32 {v(80+4*k+ch)}, v10 offset:{ch*KC_STRIDE+256*k}")
    for k in range(4):
        A(f"s_waitcnt lgkmcnt({12-4*k})")
        U, O = 100 + 8 * (k & 1), 120 + 4 * k
        for ch in range(4):
            A(f"v_lshlrev_b32 {v(U+2*ch)}, 16, {v(80+4*k+ch)}\nv_and_b32 {v(U+2*ch+1)}, 0xffff0000, {v(80+4*k+ch)}")
        A(f"""v_pk_add_f32 {v(O,2)}, {v(U,2)}, {v(U+2,2)}
        v_pk_mul_f32 {v(O+2,2)}, {v(U,2)}, {v(U,2)}
        v_pk_add_f32 {v(O,2)}, {v(O,2)}, {v(U+4,2)}
        v_pk_fma_f32 {v(O+2,2)}, {v(U+2,2)}, {v(U+2,2)}, {v(O+2,2)}
        v_pk_add_f32 {v(O,2)}, {v(O,2)}, {v(U+6,2)}
        v_pk_fma_f32 {v(O+2,2)}, {v(U+4,2)}, {v(U+4,2)}, {v(O+2,2)}
        v_pk_fma_f32 {v(O+2,2)}, {v(U+6,2)}, {v(U+6,2)}, {v(O+2,2)}""")
        if k: A(f"s_mov_b32 s10, {163840*k}")
        A.vm("zst", f"buffer_store_dwordx4 {v(O,4)}, v11, {s(sWS,4)}, {'s10' if k else '0'} offen{SC}")
    stamp(A, 6)
    A.wait_all()
    post(A, sROLE, FZ, 10)
    stamp(A, 7)

def job_w1(A):
    srd(A, sA, pWG, 640 * 3456); srd(A, sB, pWU, 640 * 3456)
    A(f"""v_and_b32 v2, 7, v1
    v_lshrrev_b32 v3, 3, v1
    v_mul_u32_u24 v5, {8*3456}, v3
    v_lshl_add_u32 v5, v2, 4, v5
    s_lshl_b32 s70, {s(sROLE)}, 2
    s_add_u32 s70, s70, {s(sW)}
    s_mul_i32 s70, s70, 3""")
    for e in range(3):
        A(f"""s_add_u32 s71, s70, {e}
        s_min_u32 s71, s71, 269
        s_mul_hi_u32 s72, s71, 429496730
        s_mul_i32 s73, s72, 10
        s_sub_u32 s73, s71, s73
        s_mul_i32 s10, s73, {64*3456}
        s_lshl_b32 s11, s72, 7
        s_add_u32 s10, s10, s11
        s_mul_i32 s72, s72, {160*1024}
        s_lshl_b32 s73, s73, 11
        s_add_u32 {s(74+e)}, s72, s73
        s_add_u32 {s(74+e)}, {s(74+e)}, {W1P}""")
        for i in range(8):
            A.vm(f"u{e}", f"buffer_load_dwordx4 {v(16+64*e+4*i,4)}, v5, {s(sA,4)}, s10 offen{NT()}")
            A.vm(f"u{e}", f"buffer_load_dwordx4 {v(48+64*e+4*i,4)}, v5, {s(sB,4)}, s10 offen{NT()}")
            if i < 7: A("s_add_u32 s10, s10, 3456")
    code_prefetch(A, 252)
    A(f"""s_mul_i32 s77, {s(sW)}, 16640
    v_lshrrev_b32 v6, 2, v3
    v_lshl_add_u32 v6, v6, 3, v2
    v_mul_u32_u24 v6, 1040, v6
    v_and_b32 v7, 3, v3
    v_lshl_add_u32 v6, v7, 8, v6
    v_add_u32 v6, s77, v6
    v_add_u32 v7, s77, v4
    s_mov_b32 s78, 0x05040100
    s_mov_b32 s79, 0x07060302""")
    for e in range(3):
        A.wait_vm(f"u{e}")
        if e == 0: nonce(A, 9)
        for mat in range(2):
            R = 16 + 64 * e + 32 * mat
            for col in range(8):
                O = 208 + 4 * col
                for t in range(4):
                    A(f"v_perm_b32 {v(O+t)}, {v(R+4*(2*t+1)+(col>>1))}, {v(R+4*(2*t)+(col>>1))}, {'s79' if col & 1 else 's78'}")
                m = 4 * (col >> 1) + 2 * mat + (col & 1)
                A(f"ds_write_b128 v6, {v(O,4)} offset:{16*m}")
        for x in range(16):
            A(f"ds_read_b128 {v(16+64*e+4*x,4)}, v7 offset:{1040*x}")
        for x in range(16):
            sj, oc = x >> 3, x & 7
            A(f"s_waitcnt lgkmcnt({min(15-x, 15)})")
            A(f"s_add_u32 s10, {s(74+e)}, {oc*20480}")
            A.vm("st", f"buffer_store_dwordx4 {v(16+64*e+4*x,4)}, v4, {s(sWS,4)}, s10 offen offset:{1024*sj}{SC}")
    A.wait_all()
    post(A, sROLE, FA, 10)

def job_mod(A):
    srd(A, sA, pWM, 640 * 7680); srd(A, sB, pC, 1280)
    A(f"""v_and_b32 v2, 7, v1
    v_lshrrev_b32 v3, 3, v1
    v_mul_u32_u24 v5, 20, v3
    s_mul_i32 s10, {s(sW)}, 160
    v_add_u32 v5, s10, v5
    v_lshlrev_b32 v6, 1, v5
    v_mul_u32_u24 v5, 7680, v5
    v_lshl_add_u32 v5, v2, 4, v5
    s_sub_u32 s70, {s(sROLE)}, 24
    s_add_u32 s71, s70, 10
    s_cmp_lt_u32 s70, 30
    s_cselect_b32 s71, s70, s71
    s_movk_i32 s72, {FA}""")
    A.vm("c", f"buffer_load_dwordx4 v[96:99], v6, {s(sB,4)}, 0 offen")
    A.vm("c", f"buffer_load_dwordx4 v[100:103], v6, {s(sB,4)}, 0 offen offset:16")
    A.vm("c", f"buffer_load_dwordx2 v[104:105], v6, {s(sB,4)}, 0 offen offset:32")
    def issue():
        A("s_lshl_b32 s10, s71, 7")
        for it in range(20):
            A.vm("w", f"buffer_load_dwordx4 {v(16+4*it,4)}, v5, {s(sA,4)}, s10 offen{NT()}")
            if it < 19: A("s_add_u32 s10, s10, 7680")
    issue()
    code_prefetch(A, 252)
    A.wait_vm("c")
    nonce(A, 9)
    for i in range(20):
        A(f"v_lshlrev_b32 {v(108+i)}, 16, {v(96+i//2)}" if i % 2 == 0 else f"v_and_b32 {v(108+i)}, 0xffff0000, {v(96+i//2)}")
    for i in range(20): A(f"v_mul_f32 {v(128+i)}, 0xbfb8aa3b, {v(108+i)}")
    for i in range(20): A(f"v_exp_f32 {v(128+i)}, {v(128+i)}")
    for i in range(20): A(f"v_add_f32 {v(128+i)}, 1.0, {v(128+i)}")
    for i in range(20): A(f"v_rcp_f32 {v(128+i)}, {v(128+i)}")
    for i in range(20): A(f"v_mul_f32 {v(128+i)}, {v(108+i)}, {v(128+i)}")
    for i in range(10): A(f"v_cvt_pk_bf16_f32 {v(96+i)}, {v(128+2*i)}, {v(129+2*i)}")
    for i in range(20):
        A(f"v_lshlrev_b32 {v(108+i)}, 16, {v(96+i//2)}" if i % 2 == 0 else f"v_and_b32 {v(108+i)}, 0xffff0000, {v(96+i//2)}")
    A.label("L_mod_pass")
    for it in range(20):
        A(f"s_waitcnt vmcnt({19-it})")
        U = 128 + 8 * (it & 1)
        for d in range(4):
            A(f"v_lshlrev_b32 {v(U+2*d)}, 16, {v(16+4*it+d)}\nv_and_b32 {v(U+2*d+1)}, 0xffff0000, {v(16+4*it+d)}")
        sel = it & 1
        for d in range(4):
            if it == 0:
                A(f"v_pk_mul_f32 {v(144+2*d,2)}, {v(U+2*d,2)}, {v(108+it-sel,2)} op_sel:[0,{sel}] op_sel_hi:[1,{sel}]")
            else:
                A(f"v_pk_fma_f32 {v(144+2*d,2)}, {v(U+2*d,2)}, {v(108+it-sel,2)}, {v(144+2*d,2)} op_sel:[0,{sel},0] op_sel_hi:[1,{sel},1]")
    A.vm_q = []
    A("s_nop 1")
    for d in range(8): A(f"v_add_f32_dpp {v(144+d)}, {v(144+d)}, {v(144+d)} row_ror:8 row_mask:0xf bank_mask:0xf")
    for sw in ("v_permlane16_swap_b32", "v_permlane32_swap_b32"):
        for d in range(8): A(f"v_mov_b32 {v(152+d)}, {v(144+d)}")
        for d in range(8): A(f"{sw} {v(144+d)}, {v(152+d)}")
        for d in range(8): A(f"v_add_f32 {v(144+d)}, {v(144+d)}, {v(152+d)}")
    A(f"""s_lshl_b32 s10, {s(sW)}, 8
    v_lshl_add_u32 v7, v2, 5, s10
    ds_write_b128 v7, v[144:147]
    ds_write_b128 v7, v[148:151] offset:16
    v_lshlrev_b32 v8, 2, v1
    s_waitcnt lgkmcnt(0)
    s_barrier
    ds_read_b32 v152, v8
    ds_read_b32 v153, v8 offset:256
    ds_read_b32 v154, v8 offset:512
    ds_read_b32 v155, v8 offset:768
    s_mul_hi_u32 s73, s71, 429496730
    s_cmp_eq_u32 s73, 1
    s_cselect_b32 s74, 1.0, 0
    s_cmp_eq_u32 s73, 4
    s_cselect_b32 s74, 1.0, s74
    s_lshl_b32 s10, s71, 8
    s_add_u32 s10, s10, {MODF}
    s_lshl_b32 s11, s71, 7
    s_add_u32 s11, s11, {MODB}
    v_lshlrev_b32 v156, 1, v1
    s_waitcnt lgkmcnt(0)
    v_add_f32 v152, v152, v153
    v_add_f32 v154, v154, v155
    v_add_f32 v152, v152, v154
    v_cvt_pk_bf16_f32 v152, v152, v152
    v_lshlrev_b32 v152, 16, v152
    v_add_f32 v152, s74, v152
    v_cvt_pk_bf16_f32 v153, v152, v152
    v_lshlrev_b32 v152, 16, v153
    s_cmp_lg_u32 {s(sW)}, 0
    s_cbranch_scc1 L_mod_nost
    buffer_store_dword v152, v8, {s(sWS,4)}, s10 offen{SC}
    buffer_store_short v153, v156, {s(sWS,4)}, s11 offen{SC}""")
    A.label("L_mod_nost")
    A(f"""s_mov_b32 s75, s72
    s_cmp_eq_u32 s72, {FA}
    s_cselect_b32 s76, 1, 0
    s_cmp_lt_u32 s70, 20
    s_cselect_b32 s76, s76, 0
    s_add_u32 s71, s70, 30
    s_add_u32 s10, s70, 40
    s_cmp_lt_u32 s70, 10
    s_cselect_b32 s71, s71, s10
    s_movk_i32 s72, {FB}
    s_add_u32 s75, s75, {s(sROLE)}
    s_waitcnt vmcnt(0)""")
    post(A, 75, 0, 10)
    A(f"""s_cmp_eq_u32 s76, 0
    s_cbranch_scc1 L_side_tail""")
    A.vm_q = []
    issue()
    A("s_branch L_mod_pass")
    A.vm_q = []

def job_q(A):
    srd(A, sA, pQ, NIN)
    A(f"""s_sub_u32 s70, {s(sROLE)}, 64
    v_lshrrev_b32 v2, 4, v1
    v_and_b32 v3, 15, v1
    v_lshlrev_b32 v5, 1, v2
    v_xor_b32 v5, v5, v3
    v_mul_u32_u24 v6, 1280, v2
    s_lshl_b32 s71, s70, 6
    s_lshl_b32 s10, {s(sW)}, 4
    s_add_u32 s71, s71, s10
    s_mul_i32 s71, s71, 1280
    s_mul_i32 s72, {s(sW)}, 20480""")
    fK = lambda rq: ((((rq & 1) ^ (rq >> 1)) << 3) | (rq >> 1))
    for rq in range(4):
        A(f"v_xor_b32 v7, {fK(rq)}, v5\nv_lshl_add_u32 {v(10+rq)}, v7, 4, v6")
    for rq in range(4):
        A(f"s_add_u32 s10, s71, {5120*rq}")
        for cg in range(5):
            A(f"s_add_u32 m0, s72, {rq*5120 + 768*cg}\ns_nop 0")
            A.vm("q", f"buffer_load_dwordx4 {v(10+rq)}, {s(sA,4)}, s10 offen offset:{256*cg}{NT()} lds")
    code_prefetch(A, 252)
    A(f"""v_lshrrev_b32 v5, 2, v3
    v_and_b32 v6, 3, v3
    v_lshrrev_b32 v7, 1, v5
    v_and_b32 v8, 1, v5
    v_xor_b32 v8, v8, v7
    v_lshlrev_b32 v8, 3, v8
    v_lshl_or_b32 v8, v6, 1, v8
    v_or_b32 v8, v8, v7
    v_xor_b32 v8, v8, v2
    v_mul_u32_u24 v18, 5120, v5
    v_lshl_add_u32 v18, v6, 8, v18
    v_add_u32 v18, s72, v18""")
    for e in range(4):
        A(f"v_xor_b32 v7, {4*e}, v8\nv_lshl_add_u32 {v(14+e)}, v7, 4, v18")
    A(f"""v_and_b32 v7, 1, v2
    v_lshlrev_b32 v8, 1, v5
    v_or_b32 v8, v8, v7
    v_lshlrev_b32 v18, 3, v7
    v_or_b32 v8, v8, v18
    v_lshrrev_b32 v18, 1, v6
    v_xor_b32 v8, v8, v18
    s_lshl_b32 s10, {s(sW)}, 1
    v_xor_b32 v8, s10, v8
    v_mul_u32_u24 v18, 10240, v2
    v_lshl_add_u32 v18, v5, 8, v18
    v_and_b32 v19, 1, v6
    v_lshl_add_u32 v18, v19, 3, v18""")
    for h in range(2):
        for e in range(2):
            A(f"v_xor_b32 v7, {(8*h) ^ (8*e)}, v8\nv_lshl_add_u32 {v(20+2*h+e)}, v7, 4, v18")
            if h: A(f"v_add_u32 {v(20+2*h+e)}, 5120, {v(20+2*h+e)}")
    A(f"""s_lshl_b32 s10, {s(sW)}, 4
    v_add_u32 v24, s10, v3
    v_lshlrev_b32 v24, 12, v24
    v_lshl_add_u32 v24, v2, 4, v24
    s_lshl_b32 s10, s70, 7
    s_add_u32 s10, s10, {QT}
    v_add_u32 v24, s10, v24
    v_mov_b32 v28, 0x3f803f80
    v_mov_b32 v29, 0x3f803f80
    v_mov_b32 v30, 0x3f803f80
    v_mov_b32 v31, 0x3f803f80""")
    A.wait_vm("q")
    nonce(A, 9)
    A("s_barrier")
    for jx in range(20):
        A(f"ds_read_b128 {v(40+4*jx,4)}, {v(14+(jx&3))} offset:{1024*(jx>>2)}")
    for tt in range(10):
        for half in range(2):
            for h in range(2):
                A(f"ds_read_b64_tr_b16 {v(120+8*tt+4*half+2*h,2)}, {v(20+2*h+(tt&1))} offset:{1024*(tt>>1)+40960*half}")
        if tt == 0: A("s_waitcnt lgkmcnt(4)")
        if tt < 5:
            for jx in range(4 * tt, 4 * tt + 4):
                A(f"{MF} v[32:35], v[28:31], {v(40+4*jx,4)}, {'0' if jx == 0 else 'v[32:35]'}")
                A(f"{MF} v[36:39], {v(40+4*jx,4)}, {v(40+4*jx,4)}, {'0' if jx == 0 else 'v[36:39]'}")
    for tt in range(10):
        A(f"s_waitcnt lgkmcnt({min(15, 4*(9-tt))})")
        if tt: A(f"s_mov_b32 s10, {262144*tt}")
        for half in range(2):
            A.vm("st", f"buffer_store_dwordx4 {v(120+8*tt+4*half,4)}, v24, {s(sWS,4)}, {'s10' if tt else '0'} offen offset:{64*half}{SC}")
    A(f"""v_cmp_eq_u32 vcc, 1, v6
    v_cmp_eq_u32 s[10:11], 2, v6
    s_nop 1
    v_cndmask_b32 v36, v36, v37, vcc
    v_cndmask_b32 v36, v36, v38, s[10:11]
    v_cmp_eq_u32 vcc, 3, v6
    v_mul_f32 v32, 0x3acccccd, v32
    v_lshlrev_b32 v25, 2, v3
    v_cndmask_b32 v36, v36, v39, vcc
    v_mul_f32 v33, v32, v32
    v_mov_b32 v34, 0x3acccccd
    v_fma_f32 v36, v36, v34, -v33
    v_max_f32 v36, 0, v36
    v_add_f32 v36, 0x3727c5ac, v36
    v_rsq_f32 v36, v36
    v_cmp_eq_u32 vcc, v5, v2
    v_mov_b32 v34, {OOB}
    v_mul_f32 v32, v32, v36
    v_cndmask_b32 v25, v34, v25, vcc
    s_lshl_b32 s10, s70, 8
    s_lshl_b32 s11, {s(sW)}, 6
    s_add_u32 s10, s10, s11
    s_add_u32 s10, s10, {ST1}
    s_add_u32 s11, s10, 8192""")
    A.vm("st", f"buffer_store_dword v36, v25, {s(sWS,4)}, s10 offen{SC}")
    A.vm("st", f"buffer_store_dword v32, v25, {s(sWS,4)}, s11 offen{SC}")
    A.wait_all()
    post(A, sROLE, FA, 10)

def job_wd(A):
    srd(A, sA, pWD, 1728 * 1280)
    A(f"""s_mul_i32 s71, s70, 40960
    s_mul_i32 s72, {s(sW)}, 10240
    s_add_u32 s71, s71, s72""")
    for i in range(10):
        if i % 4 == 0: A(f"s_add_u32 m0, s72, {1024*i}\ns_add_u32 s10, s71, {1024*i}")
        A.vm("wd", f"buffer_load_dwordx4 v4, {s(sA,4)}, s10 offen offset:{1024*(i%4)}{NT()} lds")
    A(f"""v_lshrrev_b32 v2, 4, v1
    v_bfe_u32 v3, v1, 2, 2
    v_and_b32 v5, 3, v1
    v_lshl_add_u32 v2, v2, 3, v3
    v_mul_u32_u24 v2, 1280, v2
    s_mul_i32 s10, {s(sW)}, 320
    v_add_u32 v2, s10, v2
    v_lshl_add_u32 v6, v5, 4, v2
    v_lshl_add_u32 v7, v5, 3, v2
    v_add_u32 v7, 128, v7
    s_add_u32 s71, s71, {WDP}""")
    A.wait_vm("wd")
    A("s_barrier")
    for x in range(10):
        cl, d = x // 5, x % 5
        for h in range(2):
            off = 5120 * h + 160 * cl + (64 * (d >> 1) + 8 * (d & 1) if d < 4 else 0)
            A(f"ds_read_b64_tr_b16 {v(16+4*x+2*h,2)}, {'v6' if d < 4 else 'v7'} offset:{off}")
    for x in range(10):
        A(f"s_waitcnt lgkmcnt({min(15, 2*(9-x))})")
        if x % 4 == 0: A(f"s_add_u32 s10, s71, {1024*x}")
        A.vm("st", f"buffer_store_dwordx4 {v(16+4*x,4)}, v4, {s(sWS,4)}, s10 offen offset:{1024*(x%4)}{SC}")
    A.wait_all()
    post(A, sROLE, FB, 10)

def side(A):
    A.label("L_side")
    A.vm_q = ["w0"]
    A(f"""s_sub_u32 {s(sROLE)}, {s(sIDX)}, 20
    s_lshl_b32 {s(sROLE)}, {s(sROLE)}, 3
    s_add_u32 {s(sROLE)}, {s(sROLE)}, {s(sXCD)}
    s_cmp_ge_u32 {s(sROLE)}, 64
    s_cbranch_scc1 L_job_q
    s_cmp_ge_u32 {s(sROLE)}, 24
    s_cbranch_scc1 L_job_mod""")
    job_w1(A)
    stamp(A, 1)
    A(f"s_mov_b32 s70, {s(sROLE)}\ns_branch L_job_wd")
    A.label("L_job_mod"); A.vm_q = ["w0"]
    job_mod(A)
    A.label("L_job_q"); A.vm_q = ["w0"]
    job_q(A)
    stamp(A, 1)
    A(f"""s_sub_u32 s70, {s(sROLE)}, 40
    s_cmp_ge_u32 s70, 54
    s_cbranch_scc1 L_side_tail""")
    A.label("L_job_wd"); A.vm_q = []
    job_wd(A)
    A.label("L_side_tail"); A.vm_q = []
    stamp(A, 2)
    w1_bases(A)
    A(f"""v_min_u32 v5, 23, v1
    v_lshlrev_b32 v5, 7, v5
    v_add_u32 v5, {fl(FA)}, v5""")
    poll(A, 5, 10, sleep=2)
    stamp(A, 3)
    for g in range(4):
        for f in w1_loads(A, [4*g, 4*g+1, 4*g+2, 4*g+3]): f()
    A(f"""s_cmp_lt_u32 {s(sIDX)}, 24
    s_cbranch_scc1 L_no_cjob
    s_cmp_ge_u32 {s(sXCD)}, 2
    s_cbranch_scc1 L_no_cjob""")
    saved = list(A.vm_q)
    for f in w1_loads(A, [16, 17, 18, 19], dst=lambda j, t: v(16+16*(j-16)+4*t, 4)): f()
    A(f"""v_min_u32 v5, 19, v1
    v_add_u32 v6, {FA+24+30}, v5
    v_add_u32 v7, {FB+24-10}, v5
    v_cmp_gt_u32 vcc, 10, v5
    v_and_b32 v2, 15, v1
    v_lshrrev_b32 v3, 4, v1
    v_cndmask_b32 v5, v7, v6, vcc
    v_lshlrev_b32 v5, 7, v5
    v_add_u32 v5, {FLG}, v5
    v_mul_u32_u24 v6, 1280, v2
    v_sub_u32 v6, {MODB + 4*1280}, v6
    v_lshl_add_u32 v6, v3, 4, v6
    v_mov_b32 v7, {OOB}
    v_cmp_gt_u32 vcc, 2, v2
    v_lshlrev_b32 v8, 6, v2
    v_lshl_add_u32 v8, v3, 4, v8
    v_cndmask_b32 v6, v7, v6, vcc
    v_cndmask_b32 v8, v7, v8, vcc""")
    poll(A, 5, 10, sleep=2)
    srd(A, sA, pWS, 216 * 128, add=CV)
    for j in range(20):
        A.vm("cb", f"buffer_load_dwordx4 {v(96+4*j,4)}, v6, {s(sWS,4)}, 0 offen offset:{64*j}{SC}")
    A.wait_all()
    for j in range(20):
        for t in range(4):
            w = a(16*j+4*t, 4) if j < 16 else v(16+16*(j-16)+4*t, 4)
            A(f"{MF} {v(176+4*t,4)}, {w}, {v(96+4*j,4)}, {'0' if j == 0 else v(176+4*t,4)}")
    A(f"""s_mul_hi_u32 s72, s70, 209716
    s_mul_hi_u32 s73, s71, 209716
    s_lshl_b32 s72, s72, 7
    s_lshl_b32 s73, s73, 7
    s_nop 3""")
    for t in range(4):
        A.vm("st", f"buffer_store_dwordx4 {v(176+4*t,4)}, v8, {s(sA,4)}, {'s72' if t < 3 else 's73'} offen offset:{128*t if t < 3 else 0}{SC}")
    A.wait_all()
    post(A, sFJ, FC, 10)
    A.label("L_no_cjob")
    A.vm_q = saved
    A(f"""s_cmp_lg_u32 s2, 255
    s_cbranch_scc1 L_not_keeper
    v_add_u32 v5, {FA}, v1
    v_lshlrev_b32 v5, 7, v5
    v_add_u32 v5, {FLG}, v5""")
    poll(A, 5, 10, sleep=2)
    A(f"v_add_u32 v5, {32*128}, v5")
    poll(A, 5, 10, sleep=2)
    A.label("L_not_keeper")
    stamp(A, 7)

G1A, ZF0, ZF1, ZR, VZ, CVR = 16, 128, 160, 192, 200, 204
X1L, STG, RED = 0, 16384, 32768
def g1_acc(t, i): return G1A + 4 * (8 * t + i)
def wd_reg(phi):
    if phi < 48: return a(64 + 4 * phi, 4)
    if phi < 64: return a(4 * (phi - 48), 4)
    return v(ZF1 + 4 * (phi - 64), 4)

def g1(A):
    A.label("L_g1")
    A(f"""s_mul_i32 s10, {s(sW)}, 40
    v_min_u32 v5, 39, v1
    v_add_u32 v5, s10, v5
    v_lshlrev_b32 v5, 7, v5
    v_add_u32 v5, {fl(FZ)}, v5
    v_lshrrev_b32 v2, 4, v1
    v_and_b32 v3, 15, v1
    s_and_b32 s74, {s(sW)}, 1
    s_lshl_b32 s74, s74, 2
    v_lshrrev_b32 v6, 1, v3
    v_xor_b32 v6, v6, v2
    v_xor_b32 v6, s74, v6
    v_lshlrev_b32 v6, 5, v6
    v_and_b32 v7, 1, v3
    v_lshl_add_u32 v6, v7, 4, v6
    v_lshl_add_u32 v6, v2, 12, v6
    s_lshl_b32 s10, {s(sW)}, 15
    s_lshl_b32 s11, {s(sMI)}, 8
    s_add_u32 s10, s10, s11
    s_add_u32 s10, s10, {ZT}
    v_add_u32 {v(VZ)}, s10, v6
    v_lshrrev_b32 v6, 2, v3
    v_and_b32 v7, 3, v3
    v_and_b32 v8, 1, v2
    v_lshl_or_b32 v8, v8, 2, v6
    v_xor_b32 v8, s74, v8
    v_lshl_add_u32 v6, v2, 3, v6
    v_lshlrev_b32 v6, 8, v6
    v_lshl_add_u32 v6, v7, 3, v6""")
    for i in range(8):
        A(f"v_xor_b32 v7, {i}, v8\nv_lshl_add_u32 {v(ZR+i)}, v7, 5, v6")
    A(f"""s_lshl_b32 s10, {s(sMI)}, 3
    s_lshr_b32 s11, {s(sFJ)}, 1
    s_add_u32 s10, s10, s11
    s_mul_i32 s10, s10, {160*128}
    s_and_b32 s11, {s(sFJ)}, 1
    s_lshl_b32 s11, s11, 2
    s_add_u32 s11, s11, {s(sW)}
    s_lshl_b32 s11, s11, 4
    s_add_u32 s10, s10, s11
    s_add_u32 s10, s10, {PST}
    v_lshl_add_u32 v10, v1, 7, s10
    v_add_u32 v11, {64*128}, v10
    v_add_u32 v12, {128*128}, v10
    v_mov_b32 v13, {OOB}
    v_cmp_gt_u32 vcc, 32, v1
    s_lshl_b32 s75, {s(sW)}, 11
    s_mov_b32 s76, 0
    v_cndmask_b32 v12, v13, v12, vcc""")
    poll(A, 5, 14, sleep=1)
    A("s_barrier")
    stamp(A, 8)
    A(f"""s_cmp_lg_u32 s2, 255
    s_cbranch_scc1 L_no_upd
    v_mov_b32 v14, {s(sN)}
    buffer_store_dword v14, off, {s(sWS,4)}, 0{SC}""")
    A.label("L_no_upd")
    def zdma(j, h):
        A(f"s_add_u32 m0, s75, {8192*j+1024*h}\ns_mov_b32 s10, {131072*j+16384*h}")
        A.vm(f"z{j}", f"buffer_load_dwordx4 {v(VZ)}, {s(sWS,4)}, s10 offen{SC} lds")
    for j in range(6):
        zdma(j, 0); zdma(j, 1)
    for k in range(3):
        A.vm("pst", f"buffer_load_dwordx4 {v(CVR+4*k,4)}, {v(10+k)}, {s(sWS,4)}, 0 offen{SC}")
    def zreads(j):
        zf = ZF0 if j % 2 == 0 else ZF1
        return [f"ds_read_b64_tr_b16 {v(zf+4*i+2*h,2)}, {v(ZR+i)} offset:{8192*(j%8)+1024*h}" for i in range(8) for h in range(2)]
    A(f"""v_add_u32 v5, {FB}, v1
    v_add_u32 v6, {FB+40}, v1
    v_cmp_gt_u32 vcc, 24, v1
    v_subrev_u32 v7, {54-FB-34}, v1
    s_nop 0
    v_cndmask_b32 v5, v6, v5, vcc
    v_cmp_gt_u32 vcc, 54, v1
    s_lshl_b32 s10, {s(sFJ)}, 7
    s_nop 0
    v_cndmask_b32 v5, v7, v5, vcc
    v_lshlrev_b32 v5, 7, v5
    v_add_u32 v5, {FLG}, v5
    s_add_u32 s10, s10, {fl(FC)}
    v_mov_b32 v6, s10
    s_lshl_b32 s10, {s(sMI)}, 7
    s_lshl_b32 s11, {s(sFJ)}, 3
    s_add_u32 s10, s10, s11
    s_lshl_b32 s11, {s(sW)}, 1
    s_add_u32 s10, s10, s11
    s_lshl_b32 s10, s10, 4
    s_add_u32 s10, s10, {ST2}
    v_lshrrev_b32 v7, 5, v1
    v_lshl_add_u32 v7, v7, 4, s10
    v_and_b32 v8, 31, v1
    v_cmp_eq_u32 vcc, 0, v8
    s_mul_i32 s77, {s(sW)}, {14*40960}
    s_mul_i32 s10, {s(sCJ)}, 5120
    v_cndmask_b32 v7, v13, v7, vcc
    s_add_u32 s77, s77, s10""")
    srd(A, sD, pWS, 54 * 40960, add=WDP)
    A.wait_vm("z0")
    A("s_barrier")
    for rd in zreads(0): A(rd)
    def w1late(i, t):
        A.vm("w1", f"s_add_u32 s10, {'s70' if t < 3 else 's71'}, {(t if t < 3 else 0)*20480+16384}\nbuffer_load_dwordx4 {a(16*i+4*t,4)}, v4, {s(sWP,4)}, s10 offen offset:{1024*i}{SC}")
    def wdload(phi):
        kk, d = divmod(phi, 5)
        A.vm("wd", f"s_add_u32 s10, s77, {kk*40960+(4096 if d == 4 else 0)}\nbuffer_load_dwordx4 {wd_reg(phi)}, v4, {s(sD,4)}, s10 offen offset:{1024*(d&3)}{SC}")
    def pst_block():
        P = CVR
        A.wait_vm("pst")
        A(f"""v_pk_add_f32 {v(P,2)}, {v(P,2)}, {v(P+4,2)}
        v_pk_add_f32 {v(P+2,2)}, {v(P+2,2)}, {v(P+6,2)}
        v_pk_add_f32 {v(P,2)}, {v(P,2)}, {v(P+8,2)}
        v_pk_add_f32 {v(P+2,2)}, {v(P+2,2)}, {v(P+10,2)}
        v_mov_b32 {v(P+5)}, {s(sN)}
        v_mov_b32 {v(P+7)}, {s(sN+1)}
        v_permlane32_swap_b32 {v(P)}, {v(P+1)}
        v_mov_b32 {v(P+8)}, 0x3acccccd
        v_permlane32_swap_b32 {v(P+2)}, {v(P+3)}
        v_add_f32 {v(P)}, {v(P)}, {v(P+1)}
        v_add_f32 {v(P+2)}, {v(P+2)}, {v(P+3)}
        s_nop 1
        v_permlane16_swap_b32 {v(P)}, {v(P+2)}
        v_add_f32 {v(P)}, {v(P)}, {v(P+2)}""")
        for sh in (1, 2, 4, 8):
            A(f"s_nop 1\nv_add_f32_dpp {v(P)}, {v(P)}, {v(P)} row_ror:{sh} row_mask:0xf bank_mask:0xf")
        A(f"""v_mov_b32 {v(P+2)}, {v(P)}
        s_nop 1
        v_permlane16_swap_b32 {v(P)}, {v(P+2)}
        v_mul_f32 {v(P)}, {v(P)}, {v(P+8)}
        v_mul_f32 {v(P+1)}, {v(P)}, {v(P)}
        v_fma_f32 {v(P+2)}, {v(P+2)}, {v(P+8)}, -{v(P+1)}
        v_max_f32 {v(P+2)}, 0, {v(P+2)}
        v_add_f32 {v(P+2)}, 0x3727c5ac, {v(P+2)}
        v_rsq_f32 {v(P+4)}, {v(P+2)}
        s_nop 0
        v_mul_f32 {v(P+6)}, {v(P)}, {v(P+4)}""")
        A.vm("gst", f"buffer_store_dwordx4 {v(P+4,4)}, v7, {s(sWS,4)}, 0 offen{SC}")
    def stg_dma():
        A(f"""s_lshl_b32 s11, {s(sW)}, 12
        s_add_u32 m0, s11, {STG}
        s_lshl_b32 s10, {s(sMI)}, 11
        s_add_u32 s10, s10, {ST2}""")
        A.vm("stg", f"buffer_load_dwordx4 v4, {s(sWS,4)}, s10 offen{SC} lds")
        A.vm("stg", f"buffer_load_dwordx4 v4, {s(sWS,4)}, s10 offen offset:1024{SC} lds")
    def cv_dma():
        srd(A, sA, pWS, 216 * 128, add=CV)
        A(f"""s_lshl_b32 s11, {s(sW)}, 12
        s_add_u32 m0, s11, {STG+2048}
        s_mul_hi_u32 s10, s70, 209716
        s_lshl_b32 s10, s10, 7""")
        A.vm("stg", f"buffer_load_dwordx4 v4, {s(sA,4)}, s10 offen{SC} lds")
    def x1dma(k):
        A(f"""s_add_u32 s11, {s(sW)}, {4*k}
        s_lshl_b32 s10, s11, 10
        s_add_u32 m0, s10, {X1L}
        s_lshl_b32 s10, s11, 15""")
        A.vm("x1", f"buffer_load_dwordx4 v9, {s(sWS,4)}, s10 offen{SC} lds")
    A(f"""s_mul_i32 s10, {s(sCJ)}, {80*4096}
    s_lshl_b32 s11, {s(sR2)}, 7
    s_add_u32 s10, s10, s11
    s_add_u32 s10, s10, {X1T}
    v_lshrrev_b32 v9, 3, v1
    v_lshlrev_b32 v9, 12, v9
    v_and_b32 v8, 7, v1
    v_lshl_add_u32 v9, v8, 4, v9
    v_add_u32 v9, s10, v9
    s_lshl_b32 s11, {s(sW)}, 12
    s_add_u32 s11, s11, {STG}
    v_lshl_add_u32 v10, v3, 4, s11
    s_lshl_b32 s10, s74, 8
    v_add_u32 v11, s10, v10
    s_sub_u32 s10, 256*4, s10
    v_add_u32 v12, s10, v10
    v_lshl_add_u32 v13, v2, 4, s11
    s_and_b32 s10, {s(sW)}, 1
    s_mul_i32 s10, s10, 3
    s_sub_u32 s10, 6, s10
    s_lshl_b32 s10, s10, 7
    v_add_u32 v14, s10, v13""")
    def st_reads():
        out = []
        for i in range(8):
            out.append(f"ds_read_b128 {v(ZF0+4*i,4)}, {'v11' if i < 4 else 'v12'} offset:{256*(i&3)}")
        return out
    def cv_reads():
        out = []
        for t in range(4):
            for n in range(2):
                out.append(f"ds_read_b128 {v(CVR+8*t+4*n,4)}, {'v13' if t < 3 else 'v14'} offset:{2048+(128*t if t < 3 else 0)+64*n}")
        return out
    phi = 0
    for j in range(20):
        if j % 2 == 0 and j < 19:
            A.wait_vm(f"z{j+1}", f"z{min(j+2,19)}")
            A("s_waitcnt lgkmcnt(0)\ns_barrier" if j else "s_barrier\ns_waitcnt lgkmcnt(0)")
        else:
            A("s_waitcnt lgkmcnt(0)")
        if j == 0: stamp(A, 9)
        if j == 3: pst_block()
        if j == 4: poll_check(A, "pb", 5, 236)
        if j == 14: poll_check(A, "pc", 6, 238)
        if j == 19: A.wait_vm("stg")
        if j in (7, 15):
            for i in range(8): A(f"v_add_u32 {v(ZR+i)}, 0x10000, {v(ZR+i)}")
        zf = ZF0 if j % 2 == 0 else ZF1
        mf = []
        for i in range(8):
            for t in range(4):
                if t == 3 and i >= 4: continue
                w = a(16*(j % 16)+4*t, 4)
                acc = v(g1_acc(t, i), 4)
                mf.append(f"{MF} {acc}, {w}, {v(zf+4*i,4)}, {'0' if j == 0 else acc}")
        fill = {}
        if j < 19: spread(fill, zreads(j + 1), 0, 19)
        else: spread(fill, st_reads() + cv_reads(), 2, 20)
        vmops = []
        if j + 6 < 20: vmops += [lambda j=j: zdma(j + 6, 0), lambda j=j: zdma(j + 6, 1)]
        if 1 <= j <= 4: vmops += [lambda i=j-1, t=t: w1late(i, t) for t in range(4)]
        if j == 2: vmops.append(lambda: poll_issue(A, "pb", 5, 236))
        if j == 12: vmops.append(lambda: poll_issue(A, "pc", 6, 238))
        if j == 15: vmops += [stg_dma, cv_dma]
        if j == 16: vmops += [lambda k=k: x1dma(k) for k in range(3)]
        if j >= 5:
            lim = 4 * (j - 4) if j <= 16 else 48 + 4 * (j - 16)
            while phi < lim:
                vmops.append(lambda p=phi: wdload(p)); phi += 1
        if vmops: spread(fill, vmops, 1, 27)
        interleave(A, mf, fill)
    stamp(A, 10)
    rest = list(range(phi, 70))
    ok, lp = A.newlabel("gok"), A.newlabel("glp")
    A("s_mov_b32 s78, 0")
    A.label(lp)
    A("s_waitcnt lgkmcnt(0)\ns_mov_b64 s[10:11], -1")
    for i in range(8):
        A(f"""v_cmp_eq_u32 vcc, {s(sN)}, {v(ZF0+4*i+1)}
        s_and_b64 s[10:11], s[10:11], vcc
        v_cmp_eq_u32 vcc, {s(sN+1)}, {v(ZF0+4*i+3)}
        s_and_b64 s[10:11], s[10:11], vcc""")
    A(f"""s_cmp_eq_u64 s[10:11], exec
    s_cbranch_scc1 {ok}
    s_add_u32 s78, s78, 1
    s_cmp_ge_u32 s78, {SPIN_LIMIT}
    s_cbranch_scc1 {ok}""")
    saved = list(A.vm_q)
    stg_dma()
    A("s_waitcnt vmcnt(0)")
    for rd in st_reads(): A(rd)
    A(f"s_branch {lp}")
    A.label(ok)
    A.vm_q = saved
    for p in rest: wdload(p)
    A(f"""s_lshl_b32 s10, {s(sMI)}, 3
    s_add_u32 s11, s10, s74
    v_add_u32 v5, s11, v2
    s_xor_b32 s11, s74, 4
    s_add_u32 s11, s10, s11
    v_add_u32 v6, s11, v2
    v_mul_u32_u24 v5, 57344, v5
    v_mul_u32_u24 v6, 57344, v6
    v_lshl_add_u32 v5, v3, 4, v5
    v_lshl_add_u32 v6, v3, 4, v6
    s_mul_hi_u32 s72, s70, 209716
    s_mul_hi_u32 s73, s71, 209716
    s_lshl_b32 s72, s72, 8
    s_lshl_b32 s73, s73, 8
    s_add_u32 s72, s72, {HH}
    s_add_u32 s73, s73, {HH}""")
    units = [(t, i0) for t in range(3) for i0 in (0, 4)] + [(3, 0)]
    TMP = (236, 244)
    for u, (t, i0) in enumerate(units):
        O = 248 if u % 2 == 0 else 240 + 0
        O = (248, 252)[u % 2]
        for k in range(4):
            i = i0 + k
            acc, st, c1, c0 = g1_acc(t, i), ZF0 + 4 * i, CVR + 8 * t, CVR + 8 * t + 4
            T = 236 + 4 * (k & 1)
            A(f"""v_pk_fma_f32 {v(T,2)}, {v(st+2,2)}, {v(c1,2)}, {v(c0,2)} op_sel:[0,0,0] op_sel_hi:[0,1,1] neg_lo:[1,0,0] neg_hi:[1,0,0]
            v_pk_fma_f32 {v(T+2,2)}, {v(st+2,2)}, {v(c1+2,2)}, {v(c0+2,2)} op_sel:[0,0,0] op_sel_hi:[0,1,1] neg_lo:[1,0,0] neg_hi:[1,0,0]
            v_pk_fma_f32 {v(T,2)}, {v(st,2)}, {v(acc,2)}, {v(T,2)} op_sel:[0,0,0] op_sel_hi:[0,1,1]
            v_pk_fma_f32 {v(T+2,2)}, {v(st,2)}, {v(acc+2,2)}, {v(T+2,2)} op_sel:[0,0,0] op_sel_hi:[0,1,1]
            v_pk_mul_f32 {v(T,2)}, {v(T,2)}, {v(T+2,2)}
            v_cvt_pk_bf16_f32 {v(O+k)}, {v(T)}, {v(T+1)}""")
        A(f"""s_nop 1
        v_permlane32_swap_b32 {v(O)}, {v(O+2)}
        v_permlane32_swap_b32 {v(O+1)}, {v(O+3)}
        s_nop 1
        v_permlane16_swap_b32 {v(O)}, {v(O+1)}
        v_permlane16_swap_b32 {v(O+2)}, {v(O+3)}""")
        A.vm("hh", f"buffer_store_dwordx4 {v(O,4)}, {'v5' if i0 == 0 else 'v6'}, {s(sWS,4)}, {'s72' if t < 3 else 's73'} offen offset:{256*t if t < 3 else 0}{SC}")
    stamp(A, 11)
    A(f"""s_lshl_b32 s79, {s(sMI)}, 4
    s_add_u32 s79, s79, {s(sFJ)}""")
    A.wait_all()
    post(A, 79, FHH, 10)
    stamp(A, 12)

G2A = 16
def ring(kk, i):
    sl = kk % 8
    return (96 + 16 * sl if sl < 4 else 184 + 16 * (sl - 4)) + 4 * i
def g2(A):
    A(f"""s_lshr_b32 s10, {s(sR2)}, 1
    s_lshl_b32 s10, s10, 4
    v_add_u32 v5, s10, v3
    v_lshlrev_b32 v5, 7, v5
    v_add_u32 v5, {fl(FHH)}, v5
    s_lshl_b32 s70, {s(sR2)}, 2
    s_mul_i32 s71, {s(sW)}, 14336
    s_add_u32 s71, s71, {HH}""")
    for i in range(4):
        A(f"""s_add_u32 s10, {s(sW)}, {i}
        s_and_b32 s10, s10, 3
        s_add_u32 s11, s10, s70
        s_mul_i32 s11, s11, 57344
        s_add_u32 s11, s11, s71
        v_add_u32 {v(10+i)}, s11, v4""")
        if i:
            A(f"""s_mul_i32 s10, s10, 15360
            s_add_u32 s10, s10, {RED+(i-1)*5120}
            v_add_u32 {v(248+i)}, s10, v4""")
    A(f"""s_mul_i32 s10, {s(sW)}, 15360
    s_add_u32 s10, s10, {RED}
    v_add_u32 v248, s10, v4
    s_mul_i32 s10, {s(sCJ)}, 320
    s_add_u32 s10, s10, {MODF+5*2560}
    v_lshl_add_u32 v6, v2, 5, s10
    v_lshl_add_u32 v7, v2, 4, s10
    v_lshrrev_b32 v8, 2, v3
    v_and_b32 v9, 3, v3
    v_lshlrev_b32 v8, 7, v8
    v_lshl_add_u32 v8, v9, 3, v8
    s_lshl_b32 s10, {s(sW)}, 5
    v_add_u32 v8, s10, v8
    v_lshl_add_u32 v9, v2, 9, v8
    v_lshl_add_u32 v8, v2, 10, v8
    s_lshl_b32 s10, {s(sR2)}, 6
    s_lshl_b32 s11, {s(sW)}, 4
    s_add_u32 s10, s10, s11
    v_add_u32 v14, s10, v3
    v_mul_u32_u24 v14, 1280, v14
    s_mul_i32 s10, {s(sCJ)}, 160
    v_add_u32 v14, s10, v14
    v_lshl_add_u32 v15, v2, 3, v14
    v_lshl_add_u32 v14, v2, 4, v14""")
    srd(A, sA, pOUT, NIN)
    poll(A, 5, 252, sleep=0)
    stamp(A, 13)
    def hload(kk, i):
        if i == 0 and kk % 4 == 0 and kk: A(f"s_movk_i32 s72, {4096*(kk//4)}")
        A.vm(f"h{kk}", f"buffer_load_dwordx4 {v(ring(kk,i),4)}, {v(10+i)}, {s(sWS,4)}, {'s72' if kk >= 4 else '0'} offen offset:{1024*(kk%4)}{SC}")
    for kk in range(8):
        for i in range(4): hload(kk, i)
    for kk in range(14):
        A.wait_vm(f"h{kk}")
        mf = []
        for i in range(4):
            for d in range(5):
                acc = v(G2A + 4 * (5 * i + d), 4)
                mf.append(f"{MF} {acc}, {wd_reg(5*kk+d)}, {v(ring(kk,i),4)}, {'0' if kk == 0 else acc}")
        fill = {}
        if kk + 8 < 14:
            for i in range(4):
                fill.setdefault(5 * i + 5, []).append(lambda kk=kk, i=i: hload(kk + 8, i))
        if kk == 8:
            for d in range(5):
                off = (128 * (d >> 1) + 16 * (d & 1)) if d < 4 else 256
                fill.setdefault(3 * d + 1, []).append(lambda d=d, off=off: A.vm("gb", f"buffer_load_dwordx4 {v(216+4*d,4)}, {'v6' if d < 4 else 'v7'}, {s(sWS,4)}, 0 offen offset:{off}{SC}"))
        if kk == 13:
            for d in range(5):
                off = (4096 * (d >> 1) + 512 * (d & 1)) if d < 4 else 8192
                fill.setdefault(2 * d + 1, []).append(f"ds_read_b64_tr_b16 {v(236+2*d,2)}, {'v8' if d < 4 else 'v9'} offset:{X1L+off}")
        interleave(A, mf, fill)
    stamp(A, 14)
    A("s_nop 3")
    for i in range(1, 4):
        for d in range(5):
            A(f"ds_write_b128 {v(248+i)}, {v(G2A+4*(5*i+d),4)} offset:{1024*d}")
    A.wait_vm("gb")
    A("s_waitcnt lgkmcnt(0)\ns_barrier")
    for k in range(3):
        for d in range(5):
            A(f"ds_read_b128 {v(128+20*k+4*d,4)}, v248 offset:{5120*k+1024*d}")
    for d in range(5):
        x = 236 + 2 * d
        A(f"""v_lshlrev_b32 {v(188+4*d)}, 16, {v(x)}
        v_and_b32 {v(189+4*d)}, 0xffff0000, {v(x)}
        v_lshlrev_b32 {v(190+4*d)}, 16, {v(x+1)}
        v_and_b32 {v(191+4*d)}, 0xffff0000, {v(x+1)}""")
    for k in range(3):
        A(f"s_waitcnt lgkmcnt({10-5*k})")
        for r in range(0, 20, 2):
            A(f"v_pk_add_f32 {v(G2A+r,2)}, {v(G2A+r,2)}, {v(128+20*k+r,2)}")
    for r in range(0, 20, 2):
        A(f"v_pk_fma_f32 {v(G2A+r,2)}, {v(G2A+r,2)}, {v(216+r,2)}, {v(188+r,2)}")
    for r in range(0, 20, 2):
        A(f"v_cvt_pk_bf16_f32 {v(40+r//2)}, {v(G2A+r)}, {v(G2A+r+1)}")
    A(f"""buffer_store_dwordx4 v[40:43], v14, {s(sA,4)}, 0 offen{C.out_mod}
    buffer_store_dwordx4 v[44:47], v14, {s(sA,4)}, 0 offen offset:64{C.out_mod}
    buffer_store_dwordx2 v[48:49], v15, {s(sA,4)}, 0 offen offset:128{C.out_mod}""")
    stamp(A, 15)

def finish(A):
    A.label("L_fin")
    if C.stamps:
        A(f"""s_waitcnt vmcnt(0)
        {TM()} s[10:11]
        s_waitcnt lgkmcnt(0)
        s_mov_b32 {s(sST+16)}, s10
        s_lshl_b32 s10, s2, 2
        s_add_u32 s10, s10, {s(sW)}
        s_lshl_b32 s10, s10, 7
        s_add_u32 s10, s10, {DBG}
        s_mov_b64 exec, 1""")
        for k in range(17):
            A(f"v_mov_b32 v10, {s(sST+k)}\nbuffer_store_dword v10, off, {s(sWS,4)}, s10 offset:{4*k}")
        A("s_waitcnt vmcnt(0)")
    A.label("L_end")
    A("s_endpgm")

def build():
    A = Asm()
    entry(A)
    conv_p0(A)
    rest = conv_main(A)
    conv_epilogue(A, rest)
    A("s_branch L_g1")
    side(A)
    g1(A)
    g2(A)
    finish(A)
    probs = check_hazards(A.lines)
    hdr = open(f"cdna_kernels/{NAME}.s.ref").read().split("; Override launch")[0]
    out = hdr + "; @launch grid=(256,1,1) block=(256,1,1) lds=163840\n"
    out += "; Generated by a Python script (hand-designed schedule): prep -> long conv -> GLU GEMM -> down GEMM,\n"
    out += "; one persistent workgroup per CU, phases linked by tagged flags in d_ws.\n"
    out += '.amdgcn_target "amdgcn-amd-amdhsa--gfx950"\n.text\n'
    out += f".globl {KNAME}\n.p2align 8\n.type {KNAME},@function\n{KNAME}:\n"
    out += A.text()
    out += f""".section .rodata,"a"
.p2align 6
.amdhsa_kernel {KNAME}
  .amdhsa_next_free_vgpr 512
  .amdhsa_next_free_sgpr 102
  .amdhsa_accum_offset 256
  .amdhsa_group_segment_fixed_size 0
  .amdhsa_kernarg_size 120
  .amdhsa_user_sgpr_count 2
  .amdhsa_user_sgpr_kernarg_segment_ptr 1
  .amdhsa_system_sgpr_workgroup_id_x 1
  .amdhsa_float_denorm_mode_32 3
.end_amdhsa_kernel
"""
    return out, probs

if __name__ == "__main__":
    path = sys.argv[1]
    for o in sys.argv[2:]:
        k, val = o.split("=")
        cur = getattr(C, k)
        setattr(C, k, (val == "1") if isinstance(cur, bool) else (int(val) if isinstance(cur, int) else val))
    txt, probs = build()
    for p in probs: print("HAZARD:", p)
    open(path, "w").write(txt)
    print("wrote", path, len(txt), "bytes,", txt.count("\n"), "lines")
```

```python
import sys, os
sys.path.insert(0, os.path.dirname(os.path.abspath(__file__)))
from emit import Asm, v, a, s, check_hazards

NAME = "adaLN_cond__ssm_conv_h3__glu_gated_bilinear__prompt"
KNAME = NAME + "_kernel"

FLG = 0x1000
FKV, FA, FB, FZ, FHH, FC = 0, 160, 256, 352, 512, 768
KVT, QT, ZT, X1T = 0x100000, 0x400000, 0x700000, 0xA00000
ST1, MODF, MODB, CV, ST2 = 0xD00000, 0xD10000, 0xD20000, 0xD30000, 0xD40000
PST = 0xE00000
W1P, WDP, HH = 0x1100000, 0x1600000, 0x1900000
DBG = 0x2100000
WS_SIZE = 0x2200000
NIN = 2048 * 640 * 2
OOB = 0x7ff00000
SPIN_LIMIT = 40000

sW, sXCD, sIDX, sROLE = 4, 5, 6, 7
sN = 8
sWS, sA, sB, sC, sWP, sD = 12, 16, 20, 24, 28, 32
pQ, pK, pV, pSH, pSK, pSD, pBX, pWG, pWU, pWD, pC, pWM, pOUT, pDBG, pWS = range(36, 66, 2)
sMI, sFJ, sR2, sCJ = 66, 67, 68, 69
sT = 70
sST = 80

class Cfg:
    stop = None
    stamps = False
    clk = False
    dbgwg = -1
    nt = True
    out_mod = ""
C = Cfg()
def NT(): return " nt" if C.nt else ""
SC = " sc1"
def fl(i): return FLG + 128 * i

def srd(A, reg, ptr, size, add=None):
    if add is None:
        A(f"s_mov_b32 {s(reg)}, {s(ptr)}\ns_and_b32 {s(reg+1)}, {s(ptr+1)}, 0xffff")
    else:
        A(f"s_add_u32 {s(reg)}, {s(ptr)}, {add}\ns_addc_u32 {s(reg+1)}, {s(ptr+1)}, 0\ns_and_b32 {s(reg+1)}, {s(reg+1)}, 0xffff")
    A(f"s_mov_b32 {s(reg+2)}, {size}\ns_mov_b32 {s(reg+3)}, 0x20000")

def TM(): return "s_memtime" if C.clk else "s_memrealtime"
def stamp(A, k):
    if C.stamps:
        A(f"{TM()} s[10:11]\ns_waitcnt lgkmcnt(0)\ns_mov_b32 {s(sST+k)}, s10")

def nonce(A, vsrc):
    A(f"""v_readfirstlane_b32 {s(sN)}, {v(vsrc)}
    s_mul_i32 {s(sN)}, {s(sN)}, 0x9e3779b1
    s_add_u32 {s(sN)}, {s(sN)}, 0x7f4a7c15
    s_not_b32 {s(sN+1)}, {s(sN)}""")

def poll_issue(A, tag, vaddr, vt):
    A.vm(tag, f"buffer_load_dwordx2 {v(vt,2)}, {v(vaddr)}, {s(sWS,4)}, 0 offen{SC}")
def poll_check(A, tag, vaddr, vt, sleep=1):
    ok, lp = A.newlabel("pok"), A.newlabel("plp")
    A.wait_vm(tag)
    A(f"""v_cmp_eq_u64 vcc, {s(sN,2)}, {v(vt,2)}
    s_cmp_eq_u64 vcc, exec
    s_cbranch_scc1 {ok}
    s_mov_b32 s10, 0""")
    A.label(lp)
    if sleep: A(f"s_sleep {sleep}")
    A(f"""buffer_load_dwordx2 {v(vt,2)}, {v(vaddr)}, {s(sWS,4)}, 0 offen{SC}
    s_add_u32 s10, s10, 1
    s_waitcnt vmcnt(0)
    v_cmp_eq_u64 vcc, {s(sN,2)}, {v(vt,2)}
    s_cmp_eq_u64 vcc, exec
    s_cbranch_scc1 {ok}
    s_cmp_lt_u32 s10, {SPIN_LIMIT}
    s_cbranch_scc1 {lp}""")
    A.label(ok)
def poll(A, vaddr, vt, sleep=1):
    poll_issue(A, "poll", vaddr, vt)
    poll_check(A, "poll", vaddr, vt, sleep)

def post(A, sidx, base, vt):
    sk = A.newlabel("post")
    A(f"""s_barrier
    s_cmp_lg_u32 {s(sW)}, 0
    s_cbranch_scc1 {sk}
    s_lshl_b32 s10, {s(sidx)}, 7
    s_add_u32 s10, s10, {fl(base)}
    v_mov_b32 {v(vt)}, {s(sN)}
    v_mov_b32 {v(vt+1)}, {s(sN+1)}
    s_mov_b64 exec, 1
    buffer_store_dwordx2 {v(vt,2)}, off, {s(sWS,4)}, s10{SC}
    s_mov_b64 exec, -1""")
    A.label(sk)

def interleave(A, mf, fill, start=0, per=1):
    for i, m in enumerate(mf):
        A(m)
        for f in fill.get(i, []):
            if callable(f): f()
            else: A(f)
    for k in sorted(fill):
        if k >= len(mf):
            for f in fill[k]:
                if callable(f): f()
                else: A(f)

def spread(fill, items, first, last):
    n = len(items)
    for i, it in enumerate(items):
        g = first + (i * (last - first + 1)) // n
        fill.setdefault(g, []).append(it)

MF = "v_mfma_f32_16x16x32_bf16"

def entry(A):
    A(f"""s_cmp_ge_u32 s2, 256
    s_cbranch_scc1 L_end
    s_load_dwordx16 s[36:51], s[0:1], 0
    s_load_dwordx8 s[52:59], s[0:1], 64
    s_load_dwordx4 s[60:63], s[0:1], 96
    s_load_dwordx2 s[64:65], s[0:1], 112""")
    if C.stamps:
        A(f"{TM()} s[{sST}:{sST+1}]")
    A(f"""v_lshrrev_b32 v2, 6, v0
    v_and_b32 v1, 63, v0
    s_and_b32 {s(sXCD)}, s2, 7
    s_lshr_b32 {s(sIDX)}, s2, 3
    v_readfirstlane_b32 {s(sW)}, v2
    v_lshlrev_b32 v4, 4, v1
    s_lshr_b32 s10, {s(sXCD)}, 1
    s_lshl_b32 s10, s10, 2
    s_lshr_b32 s11, {s(sIDX)}, 3
    s_add_u32 {s(sMI)}, s10, s11
    s_lshl_b32 s10, {s(sXCD)}, 2
    s_add_u32 {s(sR2)}, s10, s11
    s_and_b32 {s(sCJ)}, {s(sIDX)}, 7
    s_and_b32 s10, {s(sXCD)}, 1
    s_lshl_b32 s10, s10, 3
    s_add_u32 {s(sFJ)}, s10, {s(sCJ)}
    s_waitcnt lgkmcnt(0)""")
    srd(A, sWS, pWS, WS_SIZE)
    A.vm("w0", f"buffer_load_dword v9, off, {s(sWS,4)}, 0{SC}")
    if C.stamps:
        for k in range(1, 17): A(f"s_mov_b32 {s(sST+k)}, 0")
    A(f"""s_cmp_ge_u32 {s(sIDX)}, 20
    s_cbranch_scc1 L_side""")

def code_prefetch(A, vdst):
    sk = A.newlabel("pf")
    pc = A.newlabel("pc")
    A(f"""s_getpc_b64 s[10:11]""")
    A.label(pc)
    A(f"""s_lshl_b32 s3, {s(sIDX)}, 2
    s_add_u32 s3, s3, {s(sW)}
    s_lshl_b32 s3, s3, 10
    s_cmp_gt_u32 s3, (L_end-{pc})-1024
    s_cselect_b32 s3, 0, s3
    v_add_u32 {v(vdst)}, s3, v4""")
    A.vm("pf", f"global_load_dwordx4 {v(vdst,4)}, {v(vdst)}, s[10:11]")

KC_STRIDE, CP = 16640, 4160
XR0, XR_STRIDE = 66560, 4608
ST1L = 84992
def conv_p0(A):
    A(f"""s_mul_i32 {s(sROLE)}, {s(sXCD)}, 20
    s_add_u32 {s(sROLE)}, {s(sROLE)}, {s(sIDX)}
    s_lshr_b32 s70, {s(sROLE)}, 4
    s_and_b32 s71, {s(sROLE)}, 15
    s_lshl_b32 s71, s71, 7
    s_lshl_b32 s72, {s(sW)}, 5
    s_add_u32 s71, s71, s72
    v_lshrrev_b32 v2, 4, v1
    v_and_b32 v3, 15, v1
    v_lshl_add_u32 v10, v2, 3, s71
    s_movk_i32 s72, 1280
    v_mul_lo_u32 v5, v10, s72
    s_lshl_b32 s73, s70, 7
    v_lshl_add_u32 v5, v3, 3, v5
    v_add_u32 v5, s73, v5
    v_subrev_u32 v6, 3840, v5""")
    srd(A, sA, pK, NIN); srd(A, sB, pV, NIN); srd(A, sC, pSH, 5120)
    A(f"""s_movk_i32 s74, 3840
    s_movk_i32 s75, 7680
    s_lshl_b32 s73, s70, 9
    v_lshl_add_u32 v7, v3, 5, s73""")
    for i in range(11):
        if i < 3: ad, so, im = 6, "0", 1280 * i
        else:
            k = i - 3
            ad, so, im = 5, ("0", "s74", "s75")[k // 3], 1280 * (k % 3)
        A.vm("kv", f"buffer_load_dwordx2 {v(10+2*i,2) if i else v(164,2)}, {v(ad)}, {s(sA,4)}, {so} offen offset:{im}{NT()}")
    for k in range(8):
        A.vm("kv", f"buffer_load_dwordx2 {v(32+2*k,2)}, v5, {s(sB,4)}, {('0','s74','s75')[k//3]} offen offset:{1280*(k%3)}{NT()}")
    A.vm("kv", f"buffer_load_dwordx4 v[48:51], v7, {s(sC,4)}, 0 offen")
    A.vm("kv", f"buffer_load_dwordx4 v[52:55], v7, {s(sC,4)}, 0 offen offset:16")
    code_prefetch(A, 252)
    A(f"""s_lshl_b32 s73, s70, 18
    s_add_u32 s73, s73, {KVT + 4080}
    v_lshl_add_u32 v8, v3, 14, s73
    v_lshlrev_b32 v10, 1, v10
    v_sub_u32 v8, v8, v10
    s_mul_i32 s76, {s(sW)}, {KC_STRIDE}
    s_mul_i32 s77, {s(sW)}, {XR_STRIDE}
    s_add_u32 s77, s77, {XR0}
    v_mov_b32 v244, 0
    v_mov_b32 v245, 0
    v_mov_b32 v246, 0
    v_mov_b32 v247, 0
    v_and_b32 v248, 31, v1
    v_lshl_add_u32 v248, v248, 4, s77
    ds_write_b128 v248, v[244:247] offset:4096
    v_and_b32 v249, 1, v1
    v_bfe_u32 v250, v1, 1, 2
    v_mul_u32_u24 v250, {CP}, v250
    v_lshl_add_u32 v249, v249, 4, v250
    v_add_u32 v249, s76, v249
    ds_write_b128 v249, v[244:247]""")
    A.wait_vm("kv")
    nonce(A, 9)
    for c in range(4):
        for j in range(4):
            src = 48 + 2 * c + (j >> 1)
            A(f"v_lshlrev_b32 {v(56+4*j+c)}, 16, {v(src)}" if j % 2 == 0 else f"v_and_b32 {v(56+4*j+c)}, 0xffff0000, {v(src)}")
    def unpack4(dst, src):
        A(f"""v_lshlrev_b32 {v(dst)}, 16, {v(src)}
        v_and_b32 {v(dst+1)}, 0xffff0000, {v(src)}
        v_lshlrev_b32 {v(dst+2)}, 16, {v(src+1)}
        v_and_b32 {v(dst+3)}, 0xffff0000, {v(src+1)}""")
    for i in range(11):
        unpack4(72 + 4 * i, 10 + 2 * i if i else 164)
    for i in range(8):
        unpack4(116 + 4 * i, 32 + 2 * i)
    for i in range(8):
        for hp in range(2):
            P = 148 + 2 * hp
            K = lambda r: v(72 + 4 * r + 2 * hp, 2)
            T = lambda j: v(56 + 4 * j + 2 * hp, 2)
            A(f"v_pk_mul_f32 {v(P,2)}, {K(i+3)}, {T(0)}")
            for j in (1, 2, 3):
                A(f"v_pk_fma_f32 {v(P,2)}, {K(i+3-j)}, {T(j)}, {v(P,2)}")
            A(f"v_pk_mul_f32 {v(116+4*i+2*hp,2)}, {v(P,2)}, {v(116+4*i+2*hp,2)}")
    for c in range(4):
        for j in range(4):
            A(f"v_cvt_pk_bf16_f32 {v(10+4*c+j)}, {v(116+4*(7-2*j)+c)}, {v(116+4*(6-2*j)+c)}")
        if c: A(f"s_movk_i32 s10, {4096*c}")
        A.vm("kvst", f"buffer_store_dwordx4 {v(10+4*c,4)}, v8, {s(sWS,4)}, {'s10' if c else '0'} offen{SC}")
    stamp(A, 1)
    A(f"""s_lshl_b32 s78, {s(sROLE)}, 2
    s_add_u32 s78, s78, {s(sW)}
    s_lshl_b32 s79, s78, 12""")
    srd(A, sA, pSK, 4096, add="s79")
    A("v_add_u32 v5, 4, v4")
    for i in range(4):
        A.vm("sk", f"buffer_load_dwordx4 {v(164+6*i,4)}, v4, {s(sA,4)}, 0 offen offset:{1024*i}{NT()}")
        A.vm("sk", f"buffer_load_dwordx2 {v(168+6*i,2)}, v4, {s(sA,4)}, 0 offen offset:{1024*i+16}")
    for c, ad in ((0, 4), (2, 5)):
        A(f"s_add_u32 m0, s76, {c*CP+32}\ns_nop 0")
        for i in range(4):
            A.vm("skd", f"buffer_load_dwordx4 {v(ad)}, {s(sA,4)}, 0 offen offset:{1024*i} lds")
    A.wait_vm("kvst")
    post(A, sROLE, FKV, 188)
    stamp(A, 2)
    A(f"""v_and_b32 v10, 15, v1
    v_lshrrev_b32 v11, 4, v1
    v_add_u32 v12, 1, v10
    v_and_b32 v13, 3, v12
    v_mul_u32_u24 v13, {CP}, v13
    v_lshrrev_b32 v12, 2, v12
    v_lshl_add_u32 v13, v12, 3, v13
    v_lshl_add_u32 v13, v11, 4, v13
    v_add_u32 v2, s76, v13
    v_lshlrev_b32 v12, 4, v11
    v_lshlrev_b32 v13, 5, v10
    v_sub_u32 v12, v12, v13
    s_add_u32 s10, s77, 480
    v_add_u32 v3, s10, v12
    v_add_u32 v14, s76, v4
    s_and_b32 s10, {s(sROLE)}, 0xf0
    v_add_u32 v15, s10, v10
    v_lshlrev_b32 v15, 7, v15
    v_add_u32 v15, {fl(FKV)}, v15""")
    A.wait_vm("sk")
    for i in range(4):
        d = 164 + 6 * i
        o = 190 + 8 * i
        for t in range(4):
            A(f"v_alignbyte_b32 {v(o+t)}, {v(d+t+1)}, {v(d+t)}, 2")
        for t in range(4):
            A(f"v_alignbyte_b32 {v(o+4+t)}, {v(d+t+2)}, {v(d+t+1)}, 2")
        A(f"ds_write_b128 v14, {v(o,4)} offset:{CP+32+1024*i}")
        A(f"ds_write_b128 v14, {v(o+4,4)} offset:{3*CP+32+1024*i}")
    A(f"""v_lshlrev_b32 v222, 16, v164
    v_mov_b32 v223, s76
    s_mov_b64 exec, 1
    ds_write_b32 v223, v222 offset:{CP+28}
    ds_write_b32 v223, v164 offset:{2*CP+28}
    ds_write_b32 v223, v222 offset:{3*CP+24}
    ds_write_b32 v223, v190 offset:{3*CP+28}
    s_mov_b64 exec, -1""")
    poll(A, 15, 224)
    stamp(A, 3)
    A(f"s_mov_b32 m0, s77\ns_add_u32 s10, s79, {KVT}")
    for i in range(4):
        A.vm("x", f"buffer_load_dwordx4 v4, {s(sWS,4)}, s10 offen offset:{1024*i}{SC} lds")

ACC, FA0, FB0, FA1, FB1 = 16, 48, 80, 112, 144
def conv_reads(buf, r):
    fa, fb = (FA0, FB0) if buf == 0 else (FA1, FB1)
    def ra(p):
        u = 8 * p + r
        return [f"ds_read_b64 {v(fa+4*p,2)}, v2 offset:{64*u}", f"ds_read_b64 {v(fa+4*p+2,2)}, v2 offset:{64*u+8}"]
    out = ra(0)
    for q in range(8):
        out.append(f"ds_read_b128 {v(fb+4*q,4)}, v3 offset:{64*(56-(8*q-r))}")
    for p in range(1, 8):
        out += ra(p)
    return out

def w1_bases(A):
    A(f"""s_mul_i32 s70, {s(sFJ)}, 14
    s_lshr_b32 s10, {s(sW)}, 1
    s_mul_i32 s10, s10, 7
    s_add_u32 s70, s70, s10
    s_add_u32 s71, s70, 6
    s_and_b32 s10, {s(sW)}, 1
    s_mul_i32 s10, s10, 3
    s_add_u32 s70, s70, s10
    s_mul_i32 s70, s70, 20480
    s_mul_i32 s71, s71, 20480""")
    srd(A, sWP, pWS, 216 * 20480, add=W1P)

def w1_loads(A, steps, dst=None):
    out = []
    for t in range(4):
        for j in steps:
            def f(t=t, j=j, first=(j == steps[0] or j % 4 == 0)):
                if first:
                    A(f"s_add_u32 s3, {'s70' if t < 3 else 's71'}, {(t if t < 3 else 0)*20480 + 4096*(j//4)}")
                d = dst(j, t) if dst else a(16*j+4*t, 4)
                A.vm("w1", f"buffer_load_dwordx4 {d}, v4, {s(sWP,4)}, s3 offen offset:{1024*(j%4)}{SC}")
            out.append(f)
    return out

def conv_main(A):
    w1_bases(A)
    A(f"""v_min_u32 v5, 23, v1
    v_lshlrev_b32 v5, 7, v5
    v_add_u32 v5, {fl(FA)}, v5""")
    A(f"""s_lshr_b32 s10, s78, 6
    v_min_u32 v6, 35, v1
    v_subrev_u32 v7, 32, v6
    v_mul_u32_u24 v7, 10, v7
    v_add_u32 v7, s10, v7
    v_add_u32 v7, {FA+24}, v7
    v_add_u32 v8, {FA+64}, v6
    v_cmp_gt_u32 vcc, 32, v6
    s_nop 1
    v_cndmask_b32 v6, v7, v8, vcc
    v_lshlrev_b32 v6, 7, v6
    v_add_u32 v6, {FLG}, v6""")
    A.wait_vm("x", "skd")
    A("s_waitcnt lgkmcnt(0)")
    stamp(A, 4)
    for rd in conv_reads(0, 0): A(rd)
    A(f"""v_and_b32 v10, 15, v1
    v_lshrrev_b32 v11, 4, v1
    v_lshlrev_b32 v12, 5, v10
    v_lshl_add_u32 v12, v11, 3, v12
    s_add_u32 s10, s79, {QT}
    v_add_u32 v7, s10, v12
    s_add_u32 s10, s77, 504
    v_sub_u32 v8, s10, v12
    v_lshlrev_b32 v9, 1, v12
    v_add_u32 v9, {ST1L}, v9""")
    srd(A, sA, pSD, 1280)
    w1 = []
    for g in range(4):
        w1 += w1_loads(A, [4*g, 4*g+1, 4*g+2, 4*g+3])
    per = {2: 10, 3: 10, 4: 10, 5: 6, 6: 10, 7: 10}
    def epi_loads():
        out = []
        for t in range(8):
            out.append(lambda t=t: A.vm("ep", f"buffer_load_dwordx2 {v(176+2*t,2)}, v7, {s(sWS,4)}, 0 offen offset:{512*t}{SC}"))
        def st(i):
            if i == 0:
                A(f"s_lshl_b32 s72, {s(sW)}, 12\ns_add_u32 m0, s72, {ST1L}\ns_add_u32 s72, s72, {ST1}")
            A.vm("ep", f"buffer_load_dwordx4 v4, {s(sWS,4)}, s72 offen offset:{1024*i}{SC} lds")
        for i in range(4): out.append(lambda i=i: st(i))
        def cst():
            A(f"s_lshl_b32 s10, s78, 2\ns_add_u32 s10, s10, {MODF}")
            A.vm("ep", f"buffer_load_dword v196, off, {s(sWS,4)}, s10{SC}")
            A.vm("ep", f"buffer_load_dword v197, off, {s(sWS,4)}, s10 offset:2560{SC}")
            A(f"s_add_u32 s10, s10, 5120")
            A.vm("ep", f"buffer_load_dword v198, off, {s(sWS,4)}, s10{SC}")
            A(f"s_add_u32 s10, s10, 5120")
            A.vm("ep", f"buffer_load_dword v195, off, {s(sWS,4)}, s10{SC}")
            A(f"s_lshl_b32 s10, s78, 1")
            A.vm("ep", f"buffer_load_ushort v192, off, {s(sA,4)}, s10")
        out.append(cst)
        return out
    for r in range(8):
        cur = r & 1
        fa, fb = (FA0, FB0) if cur == 0 else (FA1, FB1)
        if r == 2: poll_check(A, "p1", 5, 200)
        if r == 5: poll_check(A, "p2", 6, 202)
        A("s_waitcnt lgkmcnt(0)")
        mf = []
        for p in range(8):
            for q in range(8 - p):
                t = p + q
                cc = "0" if (r == 0 and p == 0) else v(ACC+4*t, 4)
                mf.append(f"{MF} {v(ACC+4*t,4)}, {v(fa+4*p,4)}, {v(fb+4*q,4)}, {cc}")
        fill = {}
        if r < 7: spread(fill, conv_reads(1 - cur, r + 1), 0, 27)
        if r == 1: fill.setdefault(0, []).append(lambda: poll_issue(A, "p1", 5, 200))
        if r == 4: fill.setdefault(0, []).append(lambda: poll_issue(A, "p2", 6, 202))
        vmops = (epi_loads() if r == 5 else []) + [w1.pop(0) for _ in range(per.get(r, 0))]
        if vmops: spread(fill, vmops, 1, 35)
        interleave(A, mf, fill)
    stamp(A, 5)
    return w1

def conv_epilogue(A, w1rest):
    A.wait_vm("ep")
    A("s_barrier")
    A("""v_lshlrev_b32 v192, 16, v192
    v_mul_f32 v193, v198, v197
    v_mul_f32 v194, v198, v196""")
    def rd(t, b):
        A(f"ds_read_b64 {v(200+12*b,2)}, v8 offset:{512*(7-t)}")
        A(f"ds_read_b128 {v(202+12*b,4)}, v9 offset:{1024*t}")
        A(f"ds_read_b128 {v(206+12*b,4)}, v9 offset:{8192+1024*t}")
    rd(0, 0)
    A(f"""v_and_b32 v10, 15, v1
    v_lshrrev_b32 v11, 4, v1
    v_and_b32 v12, 1, v11
    v_lshlrev_b32 v12, 9, v12
    v_lshl_add_u32 v12, v10, 5, v12
    v_lshrrev_b32 v11, 1, v11
    v_lshl_add_u32 v12, v11, 4, v12
    v_add_u32 v13, s76, v12
    s_add_u32 s10, s79, {X1T}
    v_add_u32 v14, s10, v12
    s_add_u32 s10, s79, {ZT}
    v_add_u32 v15, s10, v12""")
    BC0, BC1 = "op_sel:[0,0,0] op_sel_hi:[1,0,1]", "op_sel:[0,1,0] op_sel_hi:[1,1,1]"
    for t in range(8):
        b = t & 1
        if t < 7: rd(t + 1, 1 - b)
        for _ in range(3):
            if w1rest: w1rest.pop(0)()
        A(f"s_waitcnt lgkmcnt({3 if t < 7 else 0})")
        kv, rho, mr = 200 + 12 * b, 202 + 12 * b, 206 + 12 * b
        q = 176 + 2 * t
        X, Q, Y, T = 224, 228, 232, 236
        xo, zo = 48 + 8 * (t >> 1) + 2 * b, 52 + 8 * (t >> 1) + 2 * b
        A(f"""v_and_b32 {v(X)}, 0xffff0000, {v(kv+1)}
        v_lshlrev_b32 {v(X+1)}, 16, {v(kv+1)}
        v_and_b32 {v(X+2)}, 0xffff0000, {v(kv)}
        v_lshlrev_b32 {v(X+3)}, 16, {v(kv)}
        v_lshlrev_b32 {v(Q)}, 16, {v(q)}
        v_and_b32 {v(Q+1)}, 0xffff0000, {v(q)}
        v_lshlrev_b32 {v(Q+2)}, 16, {v(q+1)}
        v_and_b32 {v(Q+3)}, 0xffff0000, {v(q+1)}""")
        for h in (0, 2):
            A(f"v_pk_fma_f32 {v(Y+h,2)}, {v(X+h,2)}, v[192:193], {v(ACC+4*t+h,2)} {BC0}")
            A(f"v_pk_fma_f32 {v(T+h,2)}, {v(Q+h,2)}, {v(rho+h,2)}, {v(mr+h,2)} neg_lo:[0,0,1] neg_hi:[0,0,1]")
        for h in (0, 2):
            A(f"v_pk_fma_f32 {v(T+h,2)}, {v(T+h,2)}, v[192:193], v[194:195] op_sel:[0,1,0] op_sel_hi:[1,1,0]")
        for h in (0, 2):
            A(f"v_pk_fma_f32 {v(Y+h,2)}, {v(Y+h,2)}, {v(T+h,2)}, {v(Q+h,2)}")
        A(f"""v_cvt_pk_bf16_f32 {v(xo)}, {v(Y)}, {v(Y+1)}
        v_cvt_pk_bf16_f32 {v(xo+1)}, {v(Y+2)}, {v(Y+3)}
        v_lshlrev_b32 {v(X)}, 16, {v(xo)}
        v_and_b32 {v(X+1)}, 0xffff0000, {v(xo)}
        v_lshlrev_b32 {v(X+2)}, 16, {v(xo+1)}
        v_and_b32 {v(X+3)}, 0xffff0000, {v(xo+1)}
        v_pk_mul_f32 {v(X,2)}, {v(X,2)}, v[194:195] op_sel:[0,1] op_sel_hi:[1,1]
        v_pk_mul_f32 {v(X+2,2)}, {v(X+2,2)}, v[194:195] op_sel:[0,1] op_sel_hi:[1,1]
        v_cvt_pk_bf16_f32 {v(zo)}, {v(X)}, {v(X+1)}
        v_cvt_pk_bf16_f32 {v(zo+1)}, {v(X+2)}, {v(X+3)}""")
        if b == 1:
            x0, z0 = xo - 2, zo - 2
            A(f"""v_permlane16_swap_b32 {v(x0)}, {v(x0+2)}
            v_permlane16_swap_b32 {v(x0+1)}, {v(x0+3)}
            v_permlane16_swap_b32 {v(z0)}, {v(z0+2)}
            v_permlane16_swap_b32 {v(z0+1)}, {v(z0+3)}""")
            A.vm("zst", f"buffer_store_dwordx4 {v(z0,4)}, v15, {s(sWS,4)}, 0 offen offset:{512*(t-1)}{SC}")
            A.vm("zst", f"buffer_store_dwordx4 {v(x0,4)}, v14, {s(sWS,4)}, 0 offen offset:{512*(t-1)}{SC}")
            A(f"ds_write_b128 v13, {v(x0,4)} offset:{512*(t-1)}")
    while w1rest: w1rest.pop(0)()
    A(f"""s_lshl_b32 s10, {s(sW)}, 10
    v_lshl_add_u32 v10, v1, 2, s10
    v_lshrrev_b32 v11, 3, v1
    s_lshl_b32 s10, {s(sW)}, 5
    v_add_u32 v11, s10, v11
    v_mul_u32_u24 v11, 160, v11
    v_add_u32 v11, {s(sROLE)}, v11
    v_lshlrev_b32 v11, 7, v11
    v_and_b32 v12, 7, v1
    v_lshl_add_u32 v11, v12, 4, v11
    v_add_u32 v11, {PST}, v11
    s_waitcnt lgkmcnt(0)
    s_barrier""")
    for k in range(4):
        for ch in range(4):
            A(f"ds_read_b32 {v(80+4*k+ch)}, v10 offset:{ch*KC_STRIDE+256*k}")
    for k in range(4):
        A(f"s_waitcnt lgkmcnt({12-4*k})")
        U, O = 100 + 8 * (k & 1), 120 + 4 * k
        for ch in range(4):
            A(f"v_lshlrev_b32 {v(U+2*ch)}, 16, {v(80+4*k+ch)}\nv_and_b32 {v(U+2*ch+1)}, 0xffff0000, {v(80+4*k+ch)}")
        A(f"""v_pk_add_f32 {v(O,2)}, {v(U,2)}, {v(U+2,2)}
        v_pk_mul_f32 {v(O+2,2)}, {v(U,2)}, {v(U,2)}
        v_pk_add_f32 {v(O,2)}, {v(O,2)}, {v(U+4,2)}
        v_pk_fma_f32 {v(O+2,2)}, {v(U+2,2)}, {v(U+2,2)}, {v(O+2,2)}
        v_pk_add_f32 {v(O,2)}, {v(O,2)}, {v(U+6,2)}
        v_pk_fma_f32 {v(O+2,2)}, {v(U+4,2)}, {v(U+4,2)}, {v(O+2,2)}
        v_pk_fma_f32 {v(O+2,2)}, {v(U+6,2)}, {v(U+6,2)}, {v(O+2,2)}""")
        if k: A(f"s_mov_b32 s10, {163840*k}")
        A.vm("zst", f"buffer_store_dwordx4 {v(O,4)}, v11, {s(sWS,4)}, {'s10' if k else '0'} offen{SC}")
    stamp(A, 6)
    A.wait_all()
    post(A, sROLE, FZ, 10)
    stamp(A, 7)

def job_w1(A):
    srd(A, sA, pWG, 640 * 3456); srd(A, sB, pWU, 640 * 3456)
    A(f"""v_and_b32 v2, 7, v1
    v_lshrrev_b32 v3, 3, v1
    v_mul_u32_u24 v5, {8*3456}, v3
    v_lshl_add_u32 v5, v2, 4, v5
    s_lshl_b32 s70, {s(sROLE)}, 2
    s_add_u32 s70, s70, {s(sW)}
    s_mul_i32 s70, s70, 3""")
    for e in range(3):
        A(f"""s_add_u32 s71, s70, {e}
        s_min_u32 s71, s71, 269
        s_mul_hi_u32 s72, s71, 429496730
        s_mul_i32 s73, s72, 10
        s_sub_u32 s73, s71, s73
        s_mul_i32 s10, s73, {64*3456}
        s_lshl_b32 s11, s72, 7
        s_add_u32 s10, s10, s11
        s_mul_i32 s72, s72, {160*1024}
        s_lshl_b32 s73, s73, 11
        s_add_u32 {s(74+e)}, s72, s73
        s_add_u32 {s(74+e)}, {s(74+e)}, {W1P}""")
        for i in range(8):
            A.vm(f"u{e}", f"buffer_load_dwordx4 {v(16+64*e+4*i,4)}, v5, {s(sA,4)}, s10 offen{NT()}")
            A.vm(f"u{e}", f"buffer_load_dwordx4 {v(48+64*e+4*i,4)}, v5, {s(sB,4)}, s10 offen{NT()}")
            if i < 7: A("s_add_u32 s10, s10, 3456")
    code_prefetch(A, 252)
    A(f"""s_mul_i32 s77, {s(sW)}, 16640
    v_lshrrev_b32 v6, 2, v3
    v_lshl_add_u32 v6, v6, 3, v2
    v_mul_u32_u24 v6, 1040, v6
    v_and_b32 v7, 3, v3
    v_lshl_add_u32 v6, v7, 8, v6
    v_add_u32 v6, s77, v6
    v_add_u32 v7, s77, v4
    s_mov_b32 s78, 0x05040100
    s_mov_b32 s79, 0x07060302""")
    for e in range(3):
        A.wait_vm(f"u{e}")
        if e == 0: nonce(A, 9)
        for mat in range(2):
            R = 16 + 64 * e + 32 * mat
            for col in range(8):
                O = 208 + 4 * col
                for t in range(4):
                    A(f"v_perm_b32 {v(O+t)}, {v(R+4*(2*t+1)+(col>>1))}, {v(R+4*(2*t)+(col>>1))}, {'s79' if col & 1 else 's78'}")
                m = 4 * (col >> 1) + 2 * mat + (col & 1)
                A(f"ds_write_b128 v6, {v(O,4)} offset:{16*m}")
        for x in range(16):
            A(f"ds_read_b128 {v(16+64*e+4*x,4)}, v7 offset:{1040*x}")
        for x in range(16):
            sj, oc = x >> 3, x & 7
            A(f"s_waitcnt lgkmcnt({min(15-x, 15)})")
            A(f"s_add_u32 s10, {s(74+e)}, {oc*20480}")
            A.vm("st", f"buffer_store_dwordx4 {v(16+64*e+4*x,4)}, v4, {s(sWS,4)}, s10 offen offset:{1024*sj}{SC}")
    A.wait_all()
    post(A, sROLE, FA, 10)

def job_mod(A):
    srd(A, sA, pWM, 640 * 7680); srd(A, sB, pC, 1280)
    A(f"""v_and_b32 v2, 7, v1
    v_lshrrev_b32 v3, 3, v1
    v_mul_u32_u24 v5, 20, v3
    s_mul_i32 s10, {s(sW)}, 160
    v_add_u32 v5, s10, v5
    v_lshlrev_b32 v6, 1, v5
    v_mul_u32_u24 v5, 7680, v5
    v_lshl_add_u32 v5, v2, 4, v5
    s_sub_u32 s70, {s(sROLE)}, 24
    s_add_u32 s71, s70, 10
    s_cmp_lt_u32 s70, 30
    s_cselect_b32 s71, s70, s71
    s_movk_i32 s72, {FA}""")
    A.vm("c", f"buffer_load_dwordx4 v[96:99], v6, {s(sB,4)}, 0 offen")
    A.vm("c", f"buffer_load_dwordx4 v[100:103], v6, {s(sB,4)}, 0 offen offset:16")
    A.vm("c", f"buffer_load_dwordx2 v[104:105], v6, {s(sB,4)}, 0 offen offset:32")
    def issue():
        A("s_lshl_b32 s10, s71, 7")
        for it in range(20):
            A.vm("w", f"buffer_load_dwordx4 {v(16+4*it,4)}, v5, {s(sA,4)}, s10 offen{NT()}")
            if it < 19: A("s_add_u32 s10, s10, 7680")
    issue()
    code_prefetch(A, 252)
    A.wait_vm("c")
    nonce(A, 9)
    for i in range(20):
        A(f"v_lshlrev_b32 {v(108+i)}, 16, {v(96+i//2)}" if i % 2 == 0 else f"v_and_b32 {v(108+i)}, 0xffff0000, {v(96+i//2)}")
    for i in range(20): A(f"v_mul_f32 {v(128+i)}, 0xbfb8aa3b, {v(108+i)}")
    for i in range(20): A(f"v_exp_f32 {v(128+i)}, {v(128+i)}")
    for i in range(20): A(f"v_add_f32 {v(128+i)}, 1.0, {v(128+i)}")
    for i in range(20): A(f"v_rcp_f32 {v(128+i)}, {v(128+i)}")
    for i in range(20): A(f"v_mul_f32 {v(128+i)}, {v(108+i)}, {v(128+i)}")
    for i in range(10): A(f"v_cvt_pk_bf16_f32 {v(96+i)}, {v(128+2*i)}, {v(129+2*i)}")
    for i in range(20):
        A(f"v_lshlrev_b32 {v(108+i)}, 16, {v(96+i//2)}" if i % 2 == 0 else f"v_and_b32 {v(108+i)}, 0xffff0000, {v(96+i//2)}")
    A.label("L_mod_pass")
    for it in range(20):
        A(f"s_waitcnt vmcnt({19-it})")
        U = 128 + 8 * (it & 1)
        for d in range(4):
            A(f"v_lshlrev_b32 {v(U+2*d)}, 16, {v(16+4*it+d)}\nv_and_b32 {v(U+2*d+1)}, 0xffff0000, {v(16+4*it+d)}")
        sel = it & 1
        for d in range(4):
            if it == 0:
                A(f"v_pk_mul_f32 {v(144+2*d,2)}, {v(U+2*d,2)}, {v(108+it-sel,2)} op_sel:[0,{sel}] op_sel_hi:[1,{sel}]")
            else:
                A(f"v_pk_fma_f32 {v(144+2*d,2)}, {v(U+2*d,2)}, {v(108+it-sel,2)}, {v(144+2*d,2)} op_sel:[0,{sel},0] op_sel_hi:[1,{sel},1]")
    A.vm_q = []
    A("s_nop 1")
    for d in range(8): A(f"v_add_f32_dpp {v(144+d)}, {v(144+d)}, {v(144+d)} row_ror:8 row_mask:0xf bank_mask:0xf")
    for sw in ("v_permlane16_swap_b32", "v_permlane32_swap_b32"):
        for d in range(8): A(f"v_mov_b32 {v(152+d)}, {v(144+d)}")
        for d in range(8): A(f"{sw} {v(144+d)}, {v(152+d)}")
        for d in range(8): A(f"v_add_f32 {v(144+d)}, {v(144+d)}, {v(152+d)}")
    A(f"""s_lshl_b32 s10, {s(sW)}, 8
    v_lshl_add_u32 v7, v2, 5, s10
    ds_write_b128 v7, v[144:147]
    ds_write_b128 v7, v[148:151] offset:16
    v_lshlrev_b32 v8, 2, v1
    s_waitcnt lgkmcnt(0)
    s_barrier
    ds_read_b32 v152, v8
    ds_read_b32 v153, v8 offset:256
    ds_read_b32 v154, v8 offset:512
    ds_read_b32 v155, v8 offset:768
    s_mul_hi_u32 s73, s71, 429496730
    s_cmp_eq_u32 s73, 1
    s_cselect_b32 s74, 1.0, 0
    s_cmp_eq_u32 s73, 4
    s_cselect_b32 s74, 1.0, s74
    s_lshl_b32 s10, s71, 8
    s_add_u32 s10, s10, {MODF}
    s_lshl_b32 s11, s71, 7
    s_add_u32 s11, s11, {MODB}
    v_lshlrev_b32 v156, 1, v1
    s_waitcnt lgkmcnt(0)
    v_add_f32 v152, v152, v153
    v_add_f32 v154, v154, v155
    v_add_f32 v152, v152, v154
    v_cvt_pk_bf16_f32 v152, v152, v152
    v_lshlrev_b32 v152, 16, v152
    v_add_f32 v152, s74, v152
    v_cvt_pk_bf16_f32 v153, v152, v152
    v_lshlrev_b32 v152, 16, v153
    s_cmp_lg_u32 {s(sW)}, 0
    s_cbranch_scc1 L_mod_nost
    buffer_store_dword v152, v8, {s(sWS,4)}, s10 offen{SC}
    buffer_store_short v153, v156, {s(sWS,4)}, s11 offen{SC}""")
    A.label("L_mod_nost")
    A(f"""s_mov_b32 s75, s72
    s_cmp_eq_u32 s72, {FA}
    s_cselect_b32 s76, 1, 0
    s_cmp_lt_u32 s70, 20
    s_cselect_b32 s76, s76, 0
    s_add_u32 s71, s70, 30
    s_add_u32 s10, s70, 40
    s_cmp_lt_u32 s70, 10
    s_cselect_b32 s71, s71, s10
    s_movk_i32 s72, {FB}
    s_add_u32 s75, s75, {s(sROLE)}
    s_waitcnt vmcnt(0)""")
    post(A, 75, 0, 10)
    A(f"""s_cmp_eq_u32 s76, 0
    s_cbranch_scc1 L_side_tail""")
    A.vm_q = []
    issue()
    A("s_branch L_mod_pass")
    A.vm_q = []

def job_q(A):
    srd(A, sA, pQ, NIN)
    A(f"""s_sub_u32 s70, {s(sROLE)}, 64
    v_lshrrev_b32 v2, 4, v1
    v_and_b32 v3, 15, v1
    v_lshlrev_b32 v5, 1, v2
    v_xor_b32 v5, v5, v3
    v_mul_u32_u24 v6, 1280, v2
    s_lshl_b32 s71, s70, 6
    s_lshl_b32 s10, {s(sW)}, 4
    s_add_u32 s71, s71, s10
    s_mul_i32 s71, s71, 1280
    s_mul_i32 s72, {s(sW)}, 20480""")
    fK = lambda rq: ((((rq & 1) ^ (rq >> 1)) << 3) | (rq >> 1))
    for rq in range(4):
        A(f"v_xor_b32 v7, {fK(rq)}, v5\nv_lshl_add_u32 {v(10+rq)}, v7, 4, v6")
    for rq in range(4):
        A(f"s_add_u32 s10, s71, {5120*rq}")
        for cg in range(5):
            A(f"s_add_u32 m0, s72, {rq*5120 + 768*cg}\ns_nop 0")
            A.vm("q", f"buffer_load_dwordx4 {v(10+rq)}, {s(sA,4)}, s10 offen offset:{256*cg}{NT()} lds")
    code_prefetch(A, 252)
    A(f"""v_lshrrev_b32 v5, 2, v3
    v_and_b32 v6, 3, v3
    v_lshrrev_b32 v7, 1, v5
    v_and_b32 v8, 1, v5
    v_xor_b32 v8, v8, v7
    v_lshlrev_b32 v8, 3, v8
    v_lshl_or_b32 v8, v6, 1, v8
    v_or_b32 v8, v8, v7
    v_xor_b32 v8, v8, v2
    v_mul_u32_u24 v18, 5120, v5
    v_lshl_add_u32 v18, v6, 8, v18
    v_add_u32 v18, s72, v18""")
    for e in range(4):
        A(f"v_xor_b32 v7, {4*e}, v8\nv_lshl_add_u32 {v(14+e)}, v7, 4, v18")
    A(f"""v_and_b32 v7, 1, v2
    v_lshlrev_b32 v8, 1, v5
    v_or_b32 v8, v8, v7
    v_lshlrev_b32 v18, 3, v7
    v_or_b32 v8, v8, v18
    v_lshrrev_b32 v18, 1, v6
    v_xor_b32 v8, v8, v18
    s_lshl_b32 s10, {s(sW)}, 1
    v_xor_b32 v8, s10, v8
    v_mul_u32_u24 v18, 10240, v2
    v_lshl_add_u32 v18, v5, 8, v18
    v_and_b32 v19, 1, v6
    v_lshl_add_u32 v18, v19, 3, v18""")
    for h in range(2):
        for e in range(2):
            A(f"v_xor_b32 v7, {(8*h) ^ (8*e)}, v8\nv_lshl_add_u32 {v(20+2*h+e)}, v7, 4, v18")
            if h: A(f"v_add_u32 {v(20+2*h+e)}, 5120, {v(20+2*h+e)}")
    A(f"""s_lshl_b32 s10, {s(sW)}, 4
    v_add_u32 v24, s10, v3
    v_lshlrev_b32 v24, 12, v24
    v_lshl_add_u32 v24, v2, 4, v24
    s_lshl_b32 s10, s70, 7
    s_add_u32 s10, s10, {QT}
    v_add_u32 v24, s10, v24
    v_mov_b32 v28, 0x3f803f80
    v_mov_b32 v29, 0x3f803f80
    v_mov_b32 v30, 0x3f803f80
    v_mov_b32 v31, 0x3f803f80""")
    A.wait_vm("q")
    nonce(A, 9)
    A("s_barrier")
    for jx in range(20):
        A(f"ds_read_b128 {v(40+4*jx,4)}, {v(14+(jx&3))} offset:{1024*(jx>>2)}")
    for tt in range(10):
        for half in range(2):
            for h in range(2):
                A(f"ds_read_b64_tr_b16 {v(120+8*tt+4*half+2*h,2)}, {v(20+2*h+(tt&1))} offset:{1024*(tt>>1)+40960*half}")
        if tt == 0: A("s_waitcnt lgkmcnt(4)")
        if tt < 5:
            for jx in range(4 * tt, 4 * tt + 4):
                A(f"{MF} v[32:35], v[28:31], {v(40+4*jx,4)}, {'0' if jx == 0 else 'v[32:35]'}")
                A(f"{MF} v[36:39], {v(40+4*jx,4)}, {v(40+4*jx,4)}, {'0' if jx == 0 else 'v[36:39]'}")
    for tt in range(10):
        A(f"s_waitcnt lgkmcnt({min(15, 4*(9-tt))})")
        if tt: A(f"s_mov_b32 s10, {262144*tt}")
        for half in range(2):
            A.vm("st", f"buffer_store_dwordx4 {v(120+8*tt+4*half,4)}, v24, {s(sWS,4)}, {'s10' if tt else '0'} offen offset:{64*half}{SC}")
    A(f"""v_cmp_eq_u32 vcc, 1, v6
    v_cmp_eq_u32 s[10:11], 2, v6
    s_nop 1
    v_cndmask_b32 v36, v36, v37, vcc
    v_cndmask_b32 v36, v36, v38, s[10:11]
    v_cmp_eq_u32 vcc, 3, v6
    v_mul_f32 v32, 0x3acccccd, v32
    v_lshlrev_b32 v25, 2, v3
    v_cndmask_b32 v36, v36, v39, vcc
    v_mul_f32 v33, v32, v32
    v_mov_b32 v34, 0x3acccccd
    v_fma_f32 v36, v36, v34, -v33
    v_max_f32 v36, 0, v36
    v_add_f32 v36, 0x3727c5ac, v36
    v_rsq_f32 v36, v36
    v_cmp_eq_u32 vcc, v5, v2
    v_mov_b32 v34, {OOB}
    v_mul_f32 v32, v32, v36
    v_cndmask_b32 v25, v34, v25, vcc
    s_lshl_b32 s10, s70, 8
    s_lshl_b32 s11, {s(sW)}, 6
    s_add_u32 s10, s10, s11
    s_add_u32 s10, s10, {ST1}
    s_add_u32 s11, s10, 8192""")
    A.vm("st", f"buffer_store_dword v36, v25, {s(sWS,4)}, s10 offen{SC}")
    A.vm("st", f"buffer_store_dword v32, v25, {s(sWS,4)}, s11 offen{SC}")
    A.wait_all()
    post(A, sROLE, FA, 10)

def job_wd(A):
    srd(A, sA, pWD, 1728 * 1280)
    A(f"""s_mul_i32 s71, s70, 40960
    s_mul_i32 s72, {s(sW)}, 10240
    s_add_u32 s71, s71, s72""")
    for i in range(10):
        if i % 4 == 0: A(f"s_add_u32 m0, s72, {1024*i}\ns_add_u32 s10, s71, {1024*i}")
        A.vm("wd", f"buffer_load_dwordx4 v4, {s(sA,4)}, s10 offen offset:{1024*(i%4)}{NT()} lds")
    A(f"""v_lshrrev_b32 v2, 4, v1
    v_bfe_u32 v3, v1, 2, 2
    v_and_b32 v5, 3, v1
    v_lshl_add_u32 v2, v2, 3, v3
    v_mul_u32_u24 v2, 1280, v2
    s_mul_i32 s10, {s(sW)}, 320
    v_add_u32 v2, s10, v2
    v_lshl_add_u32 v6, v5, 4, v2
    v_lshl_add_u32 v7, v5, 3, v2
    v_add_u32 v7, 128, v7
    s_add_u32 s71, s71, {WDP}""")
    A.wait_vm("wd")
    A("s_barrier")
    for x in range(10):
        cl, d = x // 5, x % 5
        for h in range(2):
            off = 5120 * h + 160 * cl + (64 * (d >> 1) + 8 * (d & 1) if d < 4 else 0)
            A(f"ds_read_b64_tr_b16 {v(16+4*x+2*h,2)}, {'v6' if d < 4 else 'v7'} offset:{off}")
    for x in range(10):
        A(f"s_waitcnt lgkmcnt({min(15, 2*(9-x))})")
        if x % 4 == 0: A(f"s_add_u32 s10, s71, {1024*x}")
        A.vm("st", f"buffer_store_dwordx4 {v(16+4*x,4)}, v4, {s(sWS,4)}, s10 offen offset:{1024*(x%4)}{SC}")
    A.wait_all()
    post(A, sROLE, FB, 10)

def side(A):
    A.label("L_side")
    A.vm_q = ["w0"]
    A(f"""s_sub_u32 {s(sROLE)}, {s(sIDX)}, 20
    s_lshl_b32 {s(sROLE)}, {s(sROLE)}, 3
    s_add_u32 {s(sROLE)}, {s(sROLE)}, {s(sXCD)}
    s_cmp_ge_u32 {s(sROLE)}, 64
    s_cbranch_scc1 L_job_q
    s_cmp_ge_u32 {s(sROLE)}, 24
    s_cbranch_scc1 L_job_mod""")
    job_w1(A)
    stamp(A, 1)
    A(f"s_mov_b32 s70, {s(sROLE)}\ns_branch L_job_wd")
    A.label("L_job_mod"); A.vm_q = ["w0"]
    job_mod(A)
    A.label("L_job_q"); A.vm_q = ["w0"]
    job_q(A)
    stamp(A, 1)
    A(f"""s_sub_u32 s70, {s(sROLE)}, 40
    s_cmp_ge_u32 s70, 54
    s_cbranch_scc1 L_side_tail""")
    A.label("L_job_wd"); A.vm_q = []
    job_wd(A)
    A.label("L_side_tail"); A.vm_q = []
    stamp(A, 2)
    w1_bases(A)
    A(f"""v_min_u32 v5, 23, v1
    v_lshlrev_b32 v5, 7, v5
    v_add_u32 v5, {fl(FA)}, v5""")
    poll(A, 5, 10, sleep=2)
    stamp(A, 3)
    for g in range(4):
        for f in w1_loads(A, [4*g, 4*g+1, 4*g+2, 4*g+3]): f()
    A(f"""s_cmp_lt_u32 {s(sIDX)}, 24
    s_cbranch_scc1 L_no_cjob
    s_cmp_ge_u32 {s(sXCD)}, 2
    s_cbranch_scc1 L_no_cjob""")
    saved = list(A.vm_q)
    for f in w1_loads(A, [16, 17, 18, 19], dst=lambda j, t: v(16+16*(j-16)+4*t, 4)): f()
    A(f"""v_min_u32 v5, 19, v1
    v_add_u32 v6, {FA+24+30}, v5
    v_add_u32 v7, {FB+24-10}, v5
    v_cmp_gt_u32 vcc, 10, v5
    v_and_b32 v2, 15, v1
    v_lshrrev_b32 v3, 4, v1
    v_cndmask_b32 v5, v7, v6, vcc
    v_lshlrev_b32 v5, 7, v5
    v_add_u32 v5, {FLG}, v5
    v_mul_u32_u24 v6, 1280, v2
    v_sub_u32 v6, {MODB + 4*1280}, v6
    v_lshl_add_u32 v6, v3, 4, v6
    v_mov_b32 v7, {OOB}
    v_cmp_gt_u32 vcc, 2, v2
    v_lshlrev_b32 v8, 6, v2
    v_lshl_add_u32 v8, v3, 4, v8
    v_cndmask_b32 v6, v7, v6, vcc
    v_cndmask_b32 v8, v7, v8, vcc""")
    poll(A, 5, 10, sleep=2)
    srd(A, sA, pWS, 216 * 128, add=CV)
    for j in range(20):
        A.vm("cb", f"buffer_load_dwordx4 {v(96+4*j,4)}, v6, {s(sWS,4)}, 0 offen offset:{64*j}{SC}")
    A.wait_all()
    for j in range(20):
        for t in range(4):
            w = a(16*j+4*t, 4) if j < 16 else v(16+16*(j-16)+4*t, 4)
            A(f"{MF} {v(176+4*t,4)}, {w}, {v(96+4*j,4)}, {'0' if j == 0 else v(176+4*t,4)}")
    A(f"""s_mul_hi_u32 s72, s70, 209716
    s_mul_hi_u32 s73, s71, 209716
    s_lshl_b32 s72, s72, 7
    s_lshl_b32 s73, s73, 7
    s_nop 3""")
    for t in range(4):
        A.vm("st", f"buffer_store_dwordx4 {v(176+4*t,4)}, v8, {s(sA,4)}, {'s72' if t < 3 else 's73'} offen offset:{128*t if t < 3 else 0}{SC}")
    A.wait_all()
    post(A, sFJ, FC, 10)
    A.label("L_no_cjob")
    A.vm_q = saved
    A(f"""s_cmp_lg_u32 s2, 255
    s_cbranch_scc1 L_not_keeper
    v_add_u32 v5, {FA}, v1
    v_lshlrev_b32 v5, 7, v5
    v_add_u32 v5, {FLG}, v5""")
    poll(A, 5, 10, sleep=2)
    A(f"v_add_u32 v5, {32*128}, v5")
    poll(A, 5, 10, sleep=2)
    A.label("L_not_keeper")
    stamp(A, 7)

G1A, ZF0, ZF1, ZR, VZ, CVR = 16, 128, 160, 192, 200, 204
X1L, STG, RED = 0, 16384, 32768
def g1_acc(t, i): return G1A + 4 * (8 * t + i)
def wd_reg(phi):
    if phi < 48: return a(64 + 4 * phi, 4)
    if phi < 64: return a(4 * (phi - 48), 4)
    return v(ZF1 + 4 * (phi - 64), 4)

def g1(A):
    A.label("L_g1")
    A(f"""s_mul_i32 s10, {s(sW)}, 40
    v_min_u32 v5, 39, v1
    v_add_u32 v5, s10, v5
    v_lshlrev_b32 v5, 7, v5
    v_add_u32 v5, {fl(FZ)}, v5
    v_lshrrev_b32 v2, 4, v1
    v_and_b32 v3, 15, v1
    s_and_b32 s74, {s(sW)}, 1
    s_lshl_b32 s74, s74, 2
    v_lshrrev_b32 v6, 1, v3
    v_xor_b32 v6, v6, v2
    v_xor_b32 v6, s74, v6
    v_lshlrev_b32 v6, 5, v6
    v_and_b32 v7, 1, v3
    v_lshl_add_u32 v6, v7, 4, v6
    v_lshl_add_u32 v6, v2, 12, v6
    s_lshl_b32 s10, {s(sW)}, 15
    s_lshl_b32 s11, {s(sMI)}, 8
    s_add_u32 s10, s10, s11
    s_add_u32 s10, s10, {ZT}
    v_add_u32 {v(VZ)}, s10, v6
    v_lshrrev_b32 v6, 2, v3
    v_and_b32 v7, 3, v3
    v_and_b32 v8, 1, v2
    v_lshl_or_b32 v8, v8, 2, v6
    v_xor_b32 v8, s74, v8
    v_lshl_add_u32 v6, v2, 3, v6
    v_lshlrev_b32 v6, 8, v6
    v_lshl_add_u32 v6, v7, 3, v6""")
    for i in range(8):
        A(f"v_xor_b32 v7, {i}, v8\nv_lshl_add_u32 {v(ZR+i)}, v7, 5, v6")
    A(f"""s_lshl_b32 s10, {s(sMI)}, 3
    s_lshr_b32 s11, {s(sFJ)}, 1
    s_add_u32 s10, s10, s11
    s_mul_i32 s10, s10, {160*128}
    s_and_b32 s11, {s(sFJ)}, 1
    s_lshl_b32 s11, s11, 2
    s_add_u32 s11, s11, {s(sW)}
    s_lshl_b32 s11, s11, 4
    s_add_u32 s10, s10, s11
    s_add_u32 s10, s10, {PST}
    v_lshl_add_u32 v10, v1, 7, s10
    v_add_u32 v11, {64*128}, v10
    v_add_u32 v12, {128*128}, v10
    v_mov_b32 v13, {OOB}
    v_cmp_gt_u32 vcc, 32, v1
    s_lshl_b32 s75, {s(sW)}, 11
    s_mov_b32 s76, 0
    v_cndmask_b32 v12, v13, v12, vcc""")
    poll(A, 5, 14, sleep=1)
    A("s_barrier")
    stamp(A, 8)
    A(f"""s_cmp_lg_u32 s2, 255
    s_cbranch_scc1 L_no_upd
    v_mov_b32 v14, {s(sN)}
    buffer_store_dword v14, off, {s(sWS,4)}, 0{SC}""")
    A.label("L_no_upd")
    def zdma(j, h):
        A(f"s_add_u32 m0, s75, {8192*j+1024*h}\ns_mov_b32 s10, {131072*j+16384*h}")
        A.vm(f"z{j}", f"buffer_load_dwordx4 {v(VZ)}, {s(sWS,4)}, s10 offen{SC} lds")
    for j in range(6):
        zdma(j, 0); zdma(j, 1)
    for k in range(3):
        A.vm("pst", f"buffer_load_dwordx4 {v(CVR+4*k,4)}, {v(10+k)}, {s(sWS,4)}, 0 offen{SC}")
    def zreads(j):
        zf = ZF0 if j % 2 == 0 else ZF1
        return [f"ds_read_b64_tr_b16 {v(zf+4*i+2*h,2)}, {v(ZR+i)} offset:{8192*(j%8)+1024*h}" for i in range(8) for h in range(2)]
    A(f"""v_add_u32 v5, {FB}, v1
    v_add_u32 v6, {FB+40}, v1
    v_cmp_gt_u32 vcc, 24, v1
    v_subrev_u32 v7, {54-FB-34}, v1
    s_nop 0
    v_cndmask_b32 v5, v6, v5, vcc
    v_cmp_gt_u32 vcc, 54, v1
    s_lshl_b32 s10, {s(sFJ)}, 7
    s_nop 0
    v_cndmask_b32 v5, v7, v5, vcc
    v_lshlrev_b32 v5, 7, v5
    v_add_u32 v5, {FLG}, v5
    s_add_u32 s10, s10, {fl(FC)}
    v_mov_b32 v6, s10
    s_lshl_b32 s10, {s(sMI)}, 7
    s_lshl_b32 s11, {s(sFJ)}, 3
    s_add_u32 s10, s10, s11
    s_lshl_b32 s11, {s(sW)}, 1
    s_add_u32 s10, s10, s11
    s_lshl_b32 s10, s10, 4
    s_add_u32 s10, s10, {ST2}
    v_lshrrev_b32 v7, 5, v1
    v_lshl_add_u32 v7, v7, 4, s10
    v_and_b32 v8, 31, v1
    v_cmp_eq_u32 vcc, 0, v8
    s_mul_i32 s77, {s(sW)}, {14*40960}
    s_mul_i32 s10, {s(sCJ)}, 5120
    v_cndmask_b32 v7, v13, v7, vcc
    s_add_u32 s77, s77, s10""")
    srd(A, sD, pWS, 54 * 40960, add=WDP)
    A.wait_vm("z0")
    A("s_barrier")
    for rd in zreads(0): A(rd)
    def w1late(i, t):
        A.vm("w1", f"s_add_u32 s10, {'s70' if t < 3 else 's71'}, {(t if t < 3 else 0)*20480+16384}\nbuffer_load_dwordx4 {a(16*i+4*t,4)}, v4, {s(sWP,4)}, s10 offen offset:{1024*i}{SC}")
    def wdload(phi):
        kk, d = divmod(phi, 5)
        A.vm("wd", f"s_add_u32 s10, s77, {kk*40960+(4096 if d == 4 else 0)}\nbuffer_load_dwordx4 {wd_reg(phi)}, v4, {s(sD,4)}, s10 offen offset:{1024*(d&3)}{SC}")
    def pst_block():
        P = CVR
        A.wait_vm("pst")
        A(f"""v_pk_add_f32 {v(P,2)}, {v(P,2)}, {v(P+4,2)}
        v_pk_add_f32 {v(P+2,2)}, {v(P+2,2)}, {v(P+6,2)}
        v_pk_add_f32 {v(P,2)}, {v(P,2)}, {v(P+8,2)}
        v_pk_add_f32 {v(P+2,2)}, {v(P+2,2)}, {v(P+10,2)}
        v_mov_b32 {v(P+5)}, {s(sN)}
        v_mov_b32 {v(P+7)}, {s(sN+1)}
        v_permlane32_swap_b32 {v(P)}, {v(P+1)}
        v_mov_b32 {v(P+8)}, 0x3acccccd
        v_permlane32_swap_b32 {v(P+2)}, {v(P+3)}
        v_add_f32 {v(P)}, {v(P)}, {v(P+1)}
        v_add_f32 {v(P+2)}, {v(P+2)}, {v(P+3)}
        s_nop 1
        v_permlane16_swap_b32 {v(P)}, {v(P+2)}
        v_add_f32 {v(P)}, {v(P)}, {v(P+2)}""")
        for sh in (1, 2, 4, 8):
            A(f"s_nop 1\nv_add_f32_dpp {v(P)}, {v(P)}, {v(P)} row_ror:{sh} row_mask:0xf bank_mask:0xf")
        A(f"""v_mov_b32 {v(P+2)}, {v(P)}
        s_nop 1
        v_permlane16_swap_b32 {v(P)}, {v(P+2)}
        v_mul_f32 {v(P)}, {v(P)}, {v(P+8)}
        v_mul_f32 {v(P+1)}, {v(P)}, {v(P)}
        v_fma_f32 {v(P+2)}, {v(P+2)}, {v(P+8)}, -{v(P+1)}
        v_max_f32 {v(P+2)}, 0, {v(P+2)}
        v_add_f32 {v(P+2)}, 0x3727c5ac, {v(P+2)}
        v_rsq_f32 {v(P+4)}, {v(P+2)}
        s_nop 0
        v_mul_f32 {v(P+6)}, {v(P)}, {v(P+4)}""")
        A.vm("gst", f"buffer_store_dwordx4 {v(P+4,4)}, v7, {s(sWS,4)}, 0 offen{SC}")
    def stg_dma():
        A(f"""s_lshl_b32 s11, {s(sW)}, 12
        s_add_u32 m0, s11, {STG}
        s_lshl_b32 s10, {s(sMI)}, 11
        s_add_u32 s10, s10, {ST2}""")
        A.vm("stg", f"buffer_load_dwordx4 v4, {s(sWS,4)}, s10 offen{SC} lds")
        A.vm("stg", f"buffer_load_dwordx4 v4, {s(sWS,4)}, s10 offen offset:1024{SC} lds")
    def cv_dma():
        srd(A, sA, pWS, 216 * 128, add=CV)
        A(f"""s_lshl_b32 s11, {s(sW)}, 12
        s_add_u32 m0, s11, {STG+2048}
        s_mul_hi_u32 s10, s70, 209716
        s_lshl_b32 s10, s10, 7""")
        A.vm("stg", f"buffer_load_dwordx4 v4, {s(sA,4)}, s10 offen{SC} lds")
    def x1dma(k):
        A(f"""s_add_u32 s11, {s(sW)}, {4*k}
        s_lshl_b32 s10, s11, 10
        s_add_u32 m0, s10, {X1L}
        s_lshl_b32 s10, s11, 15""")
        A.vm("x1", f"buffer_load_dwordx4 v9, {s(sWS,4)}, s10 offen{SC} lds")
    A(f"""s_mul_i32 s10, {s(sCJ)}, {80*4096}
    s_lshl_b32 s11, {s(sR2)}, 7
    s_add_u32 s10, s10, s11
    s_add_u32 s10, s10, {X1T}
    v_lshrrev_b32 v9, 3, v1
    v_lshlrev_b32 v9, 12, v9
    v_and_b32 v8, 7, v1
    v_lshl_add_u32 v9, v8, 4, v9
    v_add_u32 v9, s10, v9
    s_lshl_b32 s11, {s(sW)}, 12
    s_add_u32 s11, s11, {STG}
    v_lshl_add_u32 v10, v3, 4, s11
    s_lshl_b32 s10, s74, 8
    v_add_u32 v11, s10, v10
    s_sub_u32 s10, 256*4, s10
    v_add_u32 v12, s10, v10
    v_lshl_add_u32 v13, v2, 4, s11
    s_and_b32 s10, {s(sW)}, 1
    s_mul_i32 s10, s10, 3
    s_sub_u32 s10, 6, s10
    s_lshl_b32 s10, s10, 7
    v_add_u32 v14, s10, v13""")
    def st_reads():
        out = []
        for i in range(8):
            out.append(f"ds_read_b128 {v(ZF0+4*i,4)}, {'v11' if i < 4 else 'v12'} offset:{256*(i&3)}")
        return out
    def cv_reads():
        out = []
        for t in range(4):
            for n in range(2):
                out.append(f"ds_read_b128 {v(CVR+8*t+4*n,4)}, {'v13' if t < 3 else 'v14'} offset:{2048+(128*t if t < 3 else 0)+64*n}")
        return out
    phi = 0
    for j in range(20):
        if j % 2 == 0 and j < 19:
            A.wait_vm(f"z{j+1}", f"z{min(j+2,19)}")
            A("s_waitcnt lgkmcnt(0)\ns_barrier" if j else "s_barrier\ns_waitcnt lgkmcnt(0)")
        else:
            A("s_waitcnt lgkmcnt(0)")
        if j == 0: stamp(A, 9)
        if j == 3: pst_block()
        if j == 4: poll_check(A, "pb", 5, 236)
        if j == 14: poll_check(A, "pc", 6, 238)
        if j == 19: A.wait_vm("stg")
        if j in (7, 15):
            for i in range(8): A(f"v_add_u32 {v(ZR+i)}, 0x10000, {v(ZR+i)}")
        zf = ZF0 if j % 2 == 0 else ZF1
        mf = []
        for i in range(8):
            for t in range(4):
                if t == 3 and i >= 4: continue
                w = a(16*(j % 16)+4*t, 4)
                acc = v(g1_acc(t, i), 4)
                mf.append(f"{MF} {acc}, {w}, {v(zf+4*i,4)}, {'0' if j == 0 else acc}")
        fill = {}
        if j < 19: spread(fill, zreads(j + 1), 0, 19)
        else: spread(fill, st_reads() + cv_reads(), 2, 20)
        vmops = []
        if j + 6 < 20: vmops += [lambda j=j: zdma(j + 6, 0), lambda j=j: zdma(j + 6, 1)]
        if 1 <= j <= 4: vmops += [lambda i=j-1, t=t: w1late(i, t) for t in range(4)]
        if j == 2: vmops.append(lambda: poll_issue(A, "pb", 5, 236))
        if j == 12: vmops.append(lambda: poll_issue(A, "pc", 6, 238))
        if j == 15: vmops += [stg_dma, cv_dma]
        if j == 16: vmops += [lambda k=k: x1dma(k) for k in range(3)]
        if j >= 5:
            lim = 4 * (j - 4) if j <= 16 else 48 + 4 * (j - 16)
            while phi < lim:
                vmops.append(lambda p=phi: wdload(p)); phi += 1
        if vmops: spread(fill, vmops, 1, 27)
        interleave(A, mf, fill)
    stamp(A, 10)
    rest = list(range(phi, 70))
    ok, lp = A.newlabel("gok"), A.newlabel("glp")
    A("s_mov_b32 s78, 0")
    A.label(lp)
    A("s_waitcnt lgkmcnt(0)\ns_mov_b64 s[10:11], -1")
    for i in range(8):
        A(f"""v_cmp_eq_u32 vcc, {s(sN)}, {v(ZF0+4*i+1)}
        s_and_b64 s[10:11], s[10:11], vcc
        v_cmp_eq_u32 vcc, {s(sN+1)}, {v(ZF0+4*i+3)}
        s_and_b64 s[10:11], s[10:11], vcc""")
    A(f"""s_cmp_eq_u64 s[10:11], exec
    s_cbranch_scc1 {ok}
    s_add_u32 s78, s78, 1
    s_cmp_ge_u32 s78, {SPIN_LIMIT}
    s_cbranch_scc1 {ok}""")
    saved = list(A.vm_q)
    stg_dma()
    A("s_waitcnt vmcnt(0)")
    for rd in st_reads(): A(rd)
    A(f"s_branch {lp}")
    A.label(ok)
    A.vm_q = saved
    for p in rest: wdload(p)
    A(f"""s_lshl_b32 s10, {s(sMI)}, 3
    s_add_u32 s11, s10, s74
    v_add_u32 v5, s11, v2
    s_xor_b32 s11, s74, 4
    s_add_u32 s11, s10, s11
    v_add_u32 v6, s11, v2
    v_mul_u32_u24 v5, 57344, v5
    v_mul_u32_u24 v6, 57344, v6
    v_lshl_add_u32 v5, v3, 4, v5
    v_lshl_add_u32 v6, v3, 4, v6
    s_mul_hi_u32 s72, s70, 209716
    s_mul_hi_u32 s73, s71, 209716
    s_lshl_b32 s72, s72, 8
    s_lshl_b32 s73, s73, 8
    s_add_u32 s72, s72, {HH}
    s_add_u32 s73, s73, {HH}""")
    units = [(t, i0) for t in range(3) for i0 in (0, 4)] + [(3, 0)]
    TMP = (236, 244)
    for u, (t, i0) in enumerate(units):
        O = 248 if u % 2 == 0 else 240 + 0
        O = (248, 252)[u % 2]
        for k in range(4):
            i = i0 + k
            acc, st, c1, c0 = g1_acc(t, i), ZF0 + 4 * i, CVR + 8 * t, CVR + 8 * t + 4
            T = 236 + 4 * (k & 1)
            A(f"""v_pk_fma_f32 {v(T,2)}, {v(st+2,2)}, {v(c1,2)}, {v(c0,2)} op_sel:[0,0,0] op_sel_hi:[0,1,1] neg_lo:[1,0,0] neg_hi:[1,0,0]
            v_pk_fma_f32 {v(T+2,2)}, {v(st+2,2)}, {v(c1+2,2)}, {v(c0+2,2)} op_sel:[0,0,0] op_sel_hi:[0,1,1] neg_lo:[1,0,0] neg_hi:[1,0,0]
            v_pk_fma_f32 {v(T,2)}, {v(st,2)}, {v(acc,2)}, {v(T,2)} op_sel:[0,0,0] op_sel_hi:[0,1,1]
            v_pk_fma_f32 {v(T+2,2)}, {v(st,2)}, {v(acc+2,2)}, {v(T+2,2)} op_sel:[0,0,0] op_sel_hi:[0,1,1]
            v_pk_mul_f32 {v(T,2)}, {v(T,2)}, {v(T+2,2)}
            v_cvt_pk_bf16_f32 {v(O+k)}, {v(T)}, {v(T+1)}""")
        A(f"""s_nop 1
        v_permlane32_swap_b32 {v(O)}, {v(O+2)}
        v_permlane32_swap_b32 {v(O+1)}, {v(O+3)}
        s_nop 1
        v_permlane16_swap_b32 {v(O)}, {v(O+1)}
        v_permlane16_swap_b32 {v(O+2)}, {v(O+3)}""")
        A.vm("hh", f"buffer_store_dwordx4 {v(O,4)}, {'v5' if i0 == 0 else 'v6'}, {s(sWS,4)}, {'s72' if t < 3 else 's73'} offen offset:{256*t if t < 3 else 0}{SC}")
    stamp(A, 11)
    A(f"""s_lshl_b32 s79, {s(sMI)}, 4
    s_add_u32 s79, s79, {s(sFJ)}""")
    A.wait_all()
    post(A, 79, FHH, 10)
    stamp(A, 12)

G2A = 16
def ring(kk, i):
    sl = kk % 8
    return (96 + 16 * sl if sl < 4 else 184 + 16 * (sl - 4)) + 4 * i
def g2(A):
    A(f"""s_lshr_b32 s10, {s(sR2)}, 1
    s_lshl_b32 s10, s10, 4
    v_add_u32 v5, s10, v3
    v_lshlrev_b32 v5, 7, v5
    v_add_u32 v5, {fl(FHH)}, v5
    s_lshl_b32 s70, {s(sR2)}, 2
    s_mul_i32 s71, {s(sW)}, 14336
    s_add_u32 s71, s71, {HH}""")
    for i in range(4):
        A(f"""s_add_u32 s10, {s(sW)}, {i}
        s_and_b32 s10, s10, 3
        s_add_u32 s11, s10, s70
        s_mul_i32 s11, s11, 57344
        s_add_u32 s11, s11, s71
        v_add_u32 {v(10+i)}, s11, v4""")
        if i:
            A(f"""s_mul_i32 s10, s10, 15360
            s_add_u32 s10, s10, {RED+(i-1)*5120}
            v_add_u32 {v(248+i)}, s10, v4""")
    A(f"""s_mul_i32 s10, {s(sW)}, 15360
    s_add_u32 s10, s10, {RED}
    v_add_u32 v248, s10, v4
    s_mul_i32 s10, {s(sCJ)}, 320
    s_add_u32 s10, s10, {MODF+5*2560}
    v_lshl_add_u32 v6, v2, 5, s10
    v_lshl_add_u32 v7, v2, 4, s10
    v_lshrrev_b32 v8, 2, v3
    v_and_b32 v9, 3, v3
    v_lshlrev_b32 v8, 7, v8
    v_lshl_add_u32 v8, v9, 3, v8
    s_lshl_b32 s10, {s(sW)}, 5
    v_add_u32 v8, s10, v8
    v_lshl_add_u32 v9, v2, 9, v8
    v_lshl_add_u32 v8, v2, 10, v8
    s_lshl_b32 s10, {s(sR2)}, 6
    s_lshl_b32 s11, {s(sW)}, 4
    s_add_u32 s10, s10, s11
    v_add_u32 v14, s10, v3
    v_mul_u32_u24 v14, 1280, v14
    s_mul_i32 s10, {s(sCJ)}, 160
    v_add_u32 v14, s10, v14
    v_lshl_add_u32 v15, v2, 3, v14
    v_lshl_add_u32 v14, v2, 4, v14""")
    srd(A, sA, pOUT, NIN)
    poll(A, 5, 252, sleep=0)
    stamp(A, 13)
    def hload(kk, i):
        if i == 0 and kk % 4 == 0 and kk: A(f"s_movk_i32 s72, {4096*(kk//4)}")
        A.vm(f"h{kk}", f"buffer_load_dwordx4 {v(ring(kk,i),4)}, {v(10+i)}, {s(sWS,4)}, {'s72' if kk >= 4 else '0'} offen offset:{1024*(kk%4)}{SC}")
    for kk in range(8):
        for i in range(4): hload(kk, i)
    for kk in range(14):
        A.wait_vm(f"h{kk}")
        mf = []
        for i in range(4):
            for d in range(5):
                acc = v(G2A + 4 * (5 * i + d), 4)
                mf.append(f"{MF} {acc}, {wd_reg(5*kk+d)}, {v(ring(kk,i),4)}, {'0' if kk == 0 else acc}")
        fill = {}
        if kk + 8 < 14:
            for i in range(4):
                fill.setdefault(5 * i + 5, []).append(lambda kk=kk, i=i: hload(kk + 8, i))
        if kk == 8:
            for d in range(5):
                off = (128 * (d >> 1) + 16 * (d & 1)) if d < 4 else 256
                fill.setdefault(3 * d + 1, []).append(lambda d=d, off=off: A.vm("gb", f"buffer_load_dwordx4 {v(216+4*d,4)}, {'v6' if d < 4 else 'v7'}, {s(sWS,4)}, 0 offen offset:{off}{SC}"))
        if kk == 13:
            for d in range(5):
                off = (4096 * (d >> 1) + 512 * (d & 1)) if d < 4 else 8192
                fill.setdefault(2 * d + 1, []).append(f"ds_read_b64_tr_b16 {v(236+2*d,2)}, {'v8' if d < 4 else 'v9'} offset:{X1L+off}")
        interleave(A, mf, fill)
    stamp(A, 14)
    A("s_nop 3")
    for i in range(1, 4):
        for d in range(5):
            A(f"ds_write_b128 {v(248+i)}, {v(G2A+4*(5*i+d),4)} offset:{1024*d}")
    A.wait_vm("gb")
    A("s_waitcnt lgkmcnt(0)\ns_barrier")
    for k in range(3):
        for d in range(5):
            A(f"ds_read_b128 {v(128+20*k+4*d,4)}, v248 offset:{5120*k+1024*d}")
    for d in range(5):
        x = 236 + 2 * d
        A(f"""v_lshlrev_b32 {v(188+4*d)}, 16, {v(x)}
        v_and_b32 {v(189+4*d)}, 0xffff0000, {v(x)}
        v_lshlrev_b32 {v(190+4*d)}, 16, {v(x+1)}
        v_and_b32 {v(191+4*d)}, 0xffff0000, {v(x+1)}""")
    for k in range(3):
        A(f"s_waitcnt lgkmcnt({10-5*k})")
        for r in range(0, 20, 2):
            A(f"v_pk_add_f32 {v(G2A+r,2)}, {v(G2A+r,2)}, {v(128+20*k+r,2)}")
    for r in range(0, 20, 2):
        A(f"v_pk_fma_f32 {v(G2A+r,2)}, {v(G2A+r,2)}, {v(216+r,2)}, {v(188+r,2)}")
    for r in range(0, 20, 2):
        A(f"v_cvt_pk_bf16_f32 {v(40+r//2)}, {v(G2A+r)}, {v(G2A+r+1)}")
    A(f"""buffer_store_dwordx4 v[40:43], v14, {s(sA,4)}, 0 offen{C.out_mod}
    buffer_store_dwordx4 v[44:47], v14, {s(sA,4)}, 0 offen offset:64{C.out_mod}
    buffer_store_dwordx2 v[48:49], v15, {s(sA,4)}, 0 offen offset:128{C.out_mod}""")
    stamp(A, 15)

def finish(A):
    A.label("L_fin")
    if C.stamps:
        A(f"""s_waitcnt vmcnt(0)
        {TM()} s[10:11]
        s_waitcnt lgkmcnt(0)
        s_mov_b32 {s(sST+16)}, s10
        s_lshl_b32 s10, s2, 2
        s_add_u32 s10, s10, {s(sW)}
        s_lshl_b32 s10, s10, 7
        s_add_u32 s10, s10, {DBG}
        s_mov_b64 exec, 1""")
        for k in range(17):
            A(f"v_mov_b32 v10, {s(sST+k)}\nbuffer_store_dword v10, off, {s(sWS,4)}, s10 offset:{4*k}")
        if C.dbgwg >= 0:
            srd(A, sA, pDBG, 256)
            A(f"s_cmp_lg_u32 s2, {C.dbgwg}\ns_cbranch_scc1 L_nodbg\ns_cmp_lg_u32 {s(sW)}, 0\ns_cbranch_scc1 L_nodbg")
            for k in range(1, 17):
                A(f"s_sub_u32 s10, {s(sST+k)}, {s(sST)}\nv_mov_b32 v10, s10\nbuffer_store_dword v10, off, {s(sA,4)}, 0 offset:{4*(k-1)}")
            A.label("L_nodbg")
        A("s_waitcnt vmcnt(0)")
    A.label("L_end")
    A("s_endpgm")

def build():
    A = Asm()
    entry(A)
    conv_p0(A)
    rest = conv_main(A)
    conv_epilogue(A, rest)
    A("s_branch L_g1")
    side(A)
    g1(A)
    g2(A)
    finish(A)
    probs = check_hazards(A.lines)
    hdr = open(f"cdna_kernels/{NAME}.s.ref").read().split("; Override launch")[0]
    out = hdr + "; @launch grid=(256,1,1) block=(256,1,1) lds=163840\n"
    out += "; Generated by a Python script (hand-designed schedule): prep -> long conv -> GLU GEMM -> down GEMM,\n"
    out += "; one persistent workgroup per CU, phases linked by tagged flags in d_ws.\n"
    out += '.amdgcn_target "amdgcn-amd-amdhsa--gfx950"\n.text\n'
    out += f".globl {KNAME}\n.p2align 8\n.type {KNAME},@function\n{KNAME}:\n"
    out += A.text()
    out += f""".section .rodata,"a"
.p2align 6
.amdhsa_kernel {KNAME}
  .amdhsa_next_free_vgpr 512
  .amdhsa_next_free_sgpr 102
  .amdhsa_accum_offset 256
  .amdhsa_group_segment_fixed_size 0
  .amdhsa_kernarg_size 120
  .amdhsa_user_sgpr_count 2
  .amdhsa_user_sgpr_kernarg_segment_ptr 1
  .amdhsa_system_sgpr_workgroup_id_x 1
  .amdhsa_float_denorm_mode_32 3
.end_amdhsa_kernel
"""
    return out, probs

if __name__ == "__main__":
    path = sys.argv[1]
    for o in sys.argv[2:]:
        k, val = o.split("=")
        cur = getattr(C, k)
        setattr(C, k, (val == "1") if isinstance(cur, bool) else (int(val) if isinstance(cur, int) else val))
    txt, probs = build()
    for p in probs: print("HAZARD:", p)
    open(path, "w").write(txt)
    print("wrote", path, len(txt), "bytes,", txt.count("\n"), "lines")
```
